```python
import torch

def _softmax(x, axis=-1):
    return torch.softmax(x, dim=axis)
def _gelu(x):
    return torch.nn.functional.gelu(x, approximate="tanh")
def _silu(x):
    return torch.nn.functional.silu(x)
def _sigmoid(x):
    return torch.sigmoid(x)
def _layernorm(x, axis=-1, eps=1e-5):
    m = x.mean(dim=axis, keepdim=True)
    v = x.var(dim=axis, keepdim=True, unbiased=False)
    return (x - m) / torch.sqrt(v + eps)
def _scatter_add(tgt, idx, src, axis=0):
    return tgt.clone().index_add_(axis, idx, src)
def _segment_sum(src, seg, n):
    out = torch.zeros((n,) + src.shape[1:], dtype=src.dtype)
    return out.index_add_(0, seg, src)
def _pad(x, pw):
    flat = tuple(v for pair in reversed(pw) for v in pair)
    return torch.nn.functional.pad(x, flat)

kernel_name = 'parallel_sum__sliding_block_cached__swiglu_ffn__decode'

def setup_inputs():

    _w = (lambda a: (lambda t: t.to(torch.bfloat16) if t.is_floating_point() else t)(torch.as_tensor(a)))
    def _A_setup():
        B, Sq, D = 4, 1, 448
        Hq, Hkv, Sk, Dh = 16, 8, 16384, 256
        assert Hq % Hkv == 0, (Hq, Hkv)
        return {
            "x": _w((lambda *s: torch.randn(*s, dtype=torch.bfloat16) * 0.05)(B, Sq, D)),
            "k_cache": _w((lambda *s: torch.randn(*s, dtype=torch.bfloat16) * 3.2)(B, Hkv, Sk, Dh)),
            "v_cache": _w((lambda *s: torch.randn(*s, dtype=torch.bfloat16) * 1.6)(B, Hkv, Sk, Dh)),
            "wq": _w((lambda *s: torch.randn(*s, dtype=torch.bfloat16) * 3.2)(D, Hq * Dh) * (D ** -0.5)),
            "wo": _w((lambda *s: torch.randn(*s, dtype=torch.bfloat16) * 1.6)(Hq * Dh, D) * ((Hq * Dh) ** -0.5)),
        }
    _A_in = _A_setup()

    def _B_setup():
        B, S, D, F = 4, 1, 448, 1792
        return {
            "x": _w((lambda *s: torch.randn(*s, dtype=torch.bfloat16) * 0.05)(B, S, D)),
            "w_gate": _w((lambda *s: torch.randn(*s, dtype=torch.bfloat16) * 0.05)(D, F)),
            "w_up": _w((lambda *s: torch.randn(*s, dtype=torch.bfloat16) * 0.05)(D, F)),
            "w_down": _w((lambda *s: torch.randn(*s, dtype=torch.bfloat16) * 0.05)(F, D)),
        }
    _B_in = _B_setup()

    return {
        "A_x": _A_in["x"],
        "A_k_cache": _A_in["k_cache"],
        "A_v_cache": _A_in["v_cache"],
        "A_wq": _A_in["wq"],
        "A_wo": _A_in["wo"],
        "B_x": _B_in["x"],
        "B_w_gate": _B_in["w_gate"],
        "B_w_up": _B_in["w_up"],
        "B_w_down": _B_in["w_down"],
    }

def reference(A_x, A_k_cache, A_v_cache, A_wq, A_wo, B_x, B_w_gate, B_w_up, B_w_down):
    def _A_ref(x, k_cache, v_cache, wq, wo):
        B, Sq, D = x.shape
        Hq, Dh = 16, 256
        Hkv, Sk = k_cache.shape[1], k_cache.shape[2]
        W = min(4096, max(256, Sk // 4))
        rep = Hq // Hkv
        q = (lambda x, *d: x.permute(*d))((x @ wq).reshape(B, Sq, Hq, Dh), 0, 2, 1, 3)
        k = (lambda x, n, axis: torch.repeat_interleave(x, n, dim=axis))(k_cache[:, :, Sk - W:, :], rep, axis=1)
        v = (lambda x, n, axis: torch.repeat_interleave(x, n, dim=axis))(v_cache[:, :, Sk - W:, :], rep, axis=1)
        scores = torch.einsum("bhqd,bhkd->bhqk", q, k) * (Dh ** -0.5)
        p = _softmax(scores, axis=-1)
        o = torch.einsum("bhqk,bhkd->bhqd", p, v)
        return (lambda x, *d: x.permute(*d))(o, 0, 2, 1, 3).reshape(B, Sq, Hq * Dh) @ wo

    def _B_ref(x, w_gate, w_up, w_down):
        g = _silu(x @ w_gate)
        u = x @ w_up
        return (g * u) @ w_down

    x = A_x
    xn = _layernorm(x, axis=-1)
    return x + _A_ref(xn, A_k_cache, A_v_cache, A_wq, A_wo) + _B_ref(xn, B_w_gate, B_w_up, B_w_down)
```

```python
import sys
KN = "parallel_sum__sliding_block_cached__swiglu_ffn__decode_kernel"
HDR = open("parallel_sum__sliding_block_cached__swiglu_ffn__decode.s.ref").read().split("; Override launch")[0]
QG, ST, P1, P2, WSN = 0x1000, 0x20000, 0x40000, 0x100000, 0x400000
L_TILE, L_XN, L_Q, L_H, L_MX, L_LS, L_RED, L_PART, L_TOT = 0, 28672, 35840, 36864, 37120, 37152, 37184, 37888, 46080
TAGM = 0x3ff
CEXP = 0x3db8aa3b
DPP = "row_mask:0xf bank_mask:0xf"
def gen(diag=False, NS=24, INFL=4, wnt="", spin=1<<20, rotmode=2):
    L=[];
    def A(s):
        for x in s.split("\n"):
            x=x.strip()
            if x: L.append(x if x.endswith(":") else "    "+x)
    def stamp(k):
        if diag: A(f"s_memrealtime s[{64+2*k}:{65+2*k}]")
    def dump():
        if not diag: return
        A("s_mov_b64 exec, -1\ns_waitcnt lgkmcnt(0) vmcnt(0)")
        A("s_lshl_b32 s60, s2, 3\ns_add_u32 s60, s60, s3\ns_lshl_b32 s60, s60, 5\ns_add_u32 s60, s60, 0x10000000")
        A("s_add_u32 s60, s30, s60\ns_addc_u32 s61, s31, 0")
        for k in range(8): A(f"v_mov_b32 v{8+k}, s{64+2*k}")
        A("v_mov_b32 v1, 0\nglobal_store_dwordx4 v1, v[8:11], s[60:61]\nglobal_store_dwordx4 v1, v[12:15], s[60:61] offset:16")
    def srd(d, lo, hi, n): A(f"s_mov_b32 s{d}, {lo}\ns_mov_b32 s{d+1}, {hi}\ns_mov_b32 s{d+2}, {n}\ns_mov_b32 s{d+3}, 0x20000")
    def masks(base, vi, vt):
        A(f"v_and_b32 v{vt}, 1, v{vi}\nv_lshlrev_b32 v{vt}, 4, v{vt}\nv_mov_b32 v{base+3}, 0xffff\nv_lshlrev_b32 v{base+3}, v{vt}, v{base+3}")
        A(f"v_bfe_u32 v{vt}, v{vi}, 1, 2")
        for k in range(4):
            A(f"v_cmp_eq_u32 vcc, {k}, v{vt}\ns_nop 1\nv_cndmask_b32 v{base+k}, 0, v{base+3}, vcc")
    def poll(name, loads, regs, tagreg, mask, tmp):
        A(f"s_mov_b32 s40, {spin}\n{name}:")
        for x in loads: A(x)
        A("s_waitcnt vmcnt(0)")
        A(f"v_xor_b32 v{tmp}, {tagreg}, v{regs[0]}")
        for r in regs[1:]: A(f"v_bitop3_b32 v{tmp}, v{r}, {tagreg}, v{tmp} bitop3:0xbe")
        A(f"v_and_b32 v{tmp}, {mask}, v{tmp}\nv_cmp_ne_u32 vcc, 0, v{tmp}")
        A(f"s_sub_u32 s40, s40, 1\ns_cbranch_scc1 {name}_x\ns_cbranch_vccnz {name}\n{name}_x:")
    def red8(op, regs):
        for m in ("row_half_mirror","quad_perm:[1,0,3,2]","quad_perm:[2,3,0,1]"):
            if len(regs)<3: A(f"s_nop {2-len(regs)}")
            for r in regs: A(f"v_{op}_f32_dpp v{r}, v{r}, v{r} {m} {DPP}")
    def swapred(op, regs, tmps):
        for sw in ("v_permlane16_swap_b32","v_permlane32_swap_b32"):
            for r,t in zip(regs,tmps): A(f"v_mov_b32 v{t}, v{r}")
            A("s_nop 1")
            for r,t in zip(regs,tmps): A(f"{sw} v{r}, v{t}")
            A("s_nop 1")
            for r,t in zip(regs,tmps): A(f"v_{op}_f32 v{r}, v{r}, v{t}")
    L.append(HDR.rstrip())
    L.append(f"; @launch grid=(256,1,1) block=(512,1,1) lds={L_TOT}")
    L.append(f'.amdgcn_target "amdgcn-amd-amdhsa--gfx950"\n.text\n.globl {KN}\n.p2align 8\n.type {KN},@function\n{KN}:')
    if diag:
        for k in range(8): A(f"s_mov_b64 s[{64+2*k}:{65+2*k}], 0")
    stamp(0)
    A("""s_load_dwordx16 s[8:23], s[0:1], 0
    s_load_dwordx8 s[24:31], s[0:1], 64
    s_cmpk_ge_u32 s2, 256
    s_cbranch_scc1 L_end
    v_lshrrev_b32 v1, 6, v0
    v_and_b32 v0, 63, v0
    v_readfirstlane_b32 s3, v1
    v_and_b32 v2, 15, v0
    v_lshrrev_b32 v3, 4, v0
    s_cmp_lt_u32 s3, 4
    s_cbranch_scc1 L_helper""")
    A("""s_and_b32 s4, s2, 31
    s_lshl_b32 s4, s4, 23
    s_lshr_b32 s5, s2, 5
    s_lshl_b32 s5, s5, 18
    s_add_u32 s4, s4, s5
    s_lshl_b32 s5, s3, 11
    s_add_u32 s4, s4, s5
    s_add_u32 s4, s4, %d
    s_lshr_b32 s6, s2, 3
    s_lshl_b32 s6, s6, 13
    v_lshlrev_b32 v1, 4, v2
    v_lshl_add_u32 v1, v3, 9, v1
    s_mov_b32 s34, 0x40000
    s_mov_b32 s35, 0x20000
    s_mov_b32 s38, 0x40000
    s_mov_b32 s39, 0x20000
    s_waitcnt lgkmcnt(0)
    s_add_u32 s32, s10, s4
    s_addc_u32 s33, s11, 0
    s_add_u32 s36, s12, s4
    s_addc_u32 s37, s13, 0""" % (12288*512-4*2048))
    RB=256-8*NS
    def issue(n):
        sl=RB+8*(n%NS); sr="s[32:35]" if n<32 else "s[36:39]"
        A(f"buffer_load_dwordx4 v[{sl}:{sl+3}], v1, {sr}, s6 offen nt")
        A(f"buffer_load_dwordx4 v[{sl+4}:{sl+7}], v1, {sr}, s6 offen offset:256 nt")
        A("s_add_u32 s6, s6, 0x2000\ns_and_b32 s6, s6, 0x3ffff")
    for n in range(NS):
        if INFL and n>=INFL: A(f"s_waitcnt vmcnt({2*INFL-2})")
        issue(n)
        if n==INFL-1 or (not INFL and n==3):
            A("s_load_dword s7, s[30:31], 0")
            A(f"v_lshrrev_b32 v4, 3, v2\nv_lshlrev_b32 v4, 9, v4\nv_lshl_add_u32 v4, v2, 4, v4\nv_xor_b32 v5, 0x200, v4")
    stamp(1)
    A("s_waitcnt lgkmcnt(0)\ns_barrier")
    A(f"ds_read_b128 v[8:11], v4 offset:{L_Q}\nds_read_b128 v[12:15], v4 offset:{L_Q+256}\nds_read_b128 v[16:19], v5 offset:{L_Q}\nds_read_b128 v[20:23], v5 offset:{L_Q+256}")
    A("s_add_u32 s7, s7, 1\ns_waitcnt lgkmcnt(0)")
    stamp(2)
    SC=24
    def fin(n):
        u,w=(4,5) if n%2==0 else (6,7); s=SC+n
        return [f"v_add_f32_dpp v{s}, v{w}, v{u} row_ror:8 {DPP}",
                f"v_add_f32_dpp v{s}, v{s}, v{s} row_half_mirror {DPP}",
                f"v_add_f32_dpp v{s}, v{s}, v{s} quad_perm:[1,0,3,2] {DPP}",
                f"v_add_f32_dpp v{s}, v{s}, v{s} quad_perm:[2,3,0,1] {DPP}",
                f"v_cvt_pk_bf16_f32 v{s}, v{s}, v{s}",
                f"v_and_b32 v{s}, 0xffff0000, v{s}"]
    def outstanding(n): return 2*(min(64,n+NS)-n-1)
    for n in range(32):
        sl=RB+8*(n%NS); u,w=(4,5) if n%2==0 else (6,7)
        A(f"v_mov_b32 v{u}, 0\nv_mov_b32 v{w}, 0\ns_waitcnt vmcnt({outstanding(n)})")
        pend=fin(n-1) if n else []
        for d in range(8):
            A(f"v_dot2c_f32_bf16 v{u}, v{sl+d}, v{8+d}\nv_dot2c_f32_bf16 v{w}, v{sl+d}, v{16+d}")
            if pend and d>=1: A(pend.pop(0))
        if n+NS<64: issue(n+NS)
    A("s_nop 2")
    for x in fin(31): A(x+"\ns_nop 1")
    stamp(3)
    A(f"v_max3_f32 v4, v{SC}, v{SC+1}, v{SC+2}\nv_max3_f32 v5, v{SC+3}, v{SC+4}, v{SC+5}")
    for k in range(6,30,4): A(f"v_max3_f32 v4, v4, v{SC+k}, v{SC+k+1}\nv_max3_f32 v5, v5, v{SC+k+2}, v{SC+k+3}")
    A(f"v_max3_f32 v4, v4, v{SC+30}, v{SC+31}\nv_max_f32 v4, v4, v5")
    swapred("max",[4],[5])
    A(f"v_lshrrev_b32 v6, 3, v2\nv_lshlrev_b32 v6, 4, v6\ns_lshl_b32 s4, s3, 2\nv_add_u32 v7, s4, v6")
    A(f"ds_write_b32 v7, v4 offset:{L_MX-16}\ns_waitcnt lgkmcnt(0)\ns_barrier")
    A(f"ds_read_b128 v[8:11], v6 offset:{L_MX}")
    masks(16,2,5)
    for k in range(8): A(f"v_mov_b32 v{56+k}, 0")
    A(f"s_mov_b32 s4, {CEXP}\ns_waitcnt lgkmcnt(0)\nv_max3_f32 v4, v8, v9, v10\nv_max_f32 v4, v4, v11")
    for k in range(32): A(f"v_sub_f32 v{SC+k}, v{SC+k}, v4")
    for k in range(32): A(f"v_mul_f32 v{SC+k}, s4, v{SC+k}")
    for k in range(32): A(f"v_exp_f32 v{SC+k}, v{SC+k}")
    A(f"v_add_f32 v4, v{SC}, v{SC+1}\nv_add_f32 v5, v{SC+2}, v{SC+3}")
    for k in range(4,32,2): A(f"v_add_f32 v4, v4, v{SC+k}\nv_add_f32 v5, v5, v{SC+k+1}")
    A("v_add_f32 v4, v4, v5")
    swapred("add",[4],[5])
    A(f"ds_write_b32 v7, v4 offset:{L_LS-16}")
    for k in range(32): A(f"v_cvt_pk_bf16_f32 v{SC+k}, v{SC+k}, v{SC+k}")
    A("s_waitcnt lgkmcnt(0)\ns_barrier")
    def mkA(n):
        a=8+4*(n%2)
        for k in range(4): A(f"v_and_b32 v{a+k}, v{SC+n}, v{16+k}")
    mkA(0)
    A(f"v_lshrrev_b32 v4, 1, v3\nv_lshlrev_b32 v4, 10, v4\nv_and_b32 v5, 1, v3\nv_lshl_add_u32 v4, v5, 4, v4\nv_lshl_add_u32 v4, v2, 5, v4\ns_lshl_b32 s4, s3, 11\nv_add_u32 v4, s4, v4")
    for n in range(32,64):
        sl=RB+8*(n%NS); a=8+4*(n%2)
        if n<63: mkA(n-32+1)
        A(f"s_waitcnt vmcnt({outstanding(n)})")
        A(f"v_mfma_f32_16x16x32_bf16 v[56:59], v[{a}:{a+3}], v[{sl}:{sl+3}], v[56:59]")
        A(f"v_mfma_f32_16x16x32_bf16 v[60:63], v[{a}:{a+3}], v[{sl+4}:{sl+7}], v[60:63]")
        if n+NS<64: issue(n+NS)
    stamp(4)
    A(f"s_nop 6\nds_write_b128 v4, v[56:59] offset:{L_PART-8192}\nds_write_b128 v4, v[60:63] offset:{L_PART-8192+512}\ns_waitcnt lgkmcnt(0)\ns_barrier")
    A("""s_cmpk_ge_u32 s2, 128
    s_cbranch_scc1 L_fin
    s_and_b32 s4, s2, 0x62
    s_cmp_eq_u32 s4, 0x62
    s_cbranch_scc1 L_fin""")
    srd(32,"s30","s31",WSN)
    A(f"""s_lshl_b32 s4, s2, 14
    s_lshl_b32 s5, s3, 12
    s_add_u32 s4, s4, s5
    s_add_u32 s4, s4, {P2-4*4096}
    v_lshlrev_b32 v1, 4, v0
    s_and_b32 s41, s7, {TAGM}""")
    A("""s_bfe_u32 s42, s2, 0x20003
    s_mul_i32 s42, s42, 896
    s_lshr_b32 s43, s2, 5
    s_lshl_b32 s43, s43, 8
    s_add_u32 s42, s42, s43
    s_and_b32 s43, s2, 3
    s_lshl_b32 s43, s43, 6
    s_add_u32 s42, s42, s43
    s_and_b32 s43, s2, 4
    s_lshl_b32 s43, s43, 1
    s_add_u32 s42, s42, s43
    v_and_b32 v4, 3, v0
    v_lshlrev_b32 v4, 4, v4""")
    srd(36,"s8","s9",3584); srd(44,"s26","s27",3584)
    A("buffer_load_dwordx2 v[6:7], v4, s[36:39], s42 offen")
    poll("L_p2",[f"buffer_load_dwordx4 v[{8+4*u}:{11+4*u}], v1, s[32:35], s4 offen offset:{1024*u} sc1" for u in range(4)],list(range(8,24)),"s41",TAGM,5)
    stamp(5)
    A(f"s_mov_b32 s43, {~TAGM&0xffffffff}")
    for r in range(8,24): A(f"v_and_b32 v{r}, s43, v{r}")
    A("v_pk_add_f32 v[8:9], v[8:9], v[12:13]\nv_pk_add_f32 v[10:11], v[10:11], v[14:15]\nv_pk_add_f32 v[16:17], v[16:17], v[20:21]\nv_pk_add_f32 v[18:19], v[18:19], v[22:23]\nv_pk_add_f32 v[8:9], v[8:9], v[16:17]\nv_pk_add_f32 v[10:11], v[10:11], v[18:19]\ns_nop 1")
    for m in ("row_ror:4","row_ror:8"):
        for r in range(8,12): A(f"v_add_f32_dpp v{r}, v{r}, v{r} {m} {DPP}")
    swapred("add",[8,9,10,11],[12,13,14,15])
    A(f"s_lshl_b32 s5, s3, 6\nv_add_u32 v5, s5, v4\nds_write_b128 v5, v[8:11] offset:{L_RED-256}\ns_waitcnt lgkmcnt(0)\ns_barrier")
    A("s_cmp_lg_u32 s3, 4\ns_cbranch_scc1 L_fin")
    for u in range(1,4): A(f"ds_read_b128 v[{8+4*u}:{11+4*u}], v4 offset:{L_RED+64*u}")
    A("""v_lshlrev_b32 v24, 16, v6
    v_and_b32 v25, 0xffff0000, v6
    v_lshlrev_b32 v26, 16, v7
    v_and_b32 v27, 0xffff0000, v7
    v_pk_add_f32 v[8:9], v[8:9], v[24:25]
    v_pk_add_f32 v[10:11], v[10:11], v[26:27]
    s_waitcnt lgkmcnt(0)
    v_pk_add_f32 v[8:9], v[8:9], v[12:13]
    v_pk_add_f32 v[10:11], v[10:11], v[14:15]
    v_pk_add_f32 v[16:17], v[16:17], v[20:21]
    v_pk_add_f32 v[18:19], v[18:19], v[22:23]
    v_pk_add_f32 v[8:9], v[8:9], v[16:17]
    v_pk_add_f32 v[10:11], v[10:11], v[18:19]
    v_cvt_pk_bf16_f32 v8, v8, v9
    v_cvt_pk_bf16_f32 v9, v10, v11
    s_mov_b64 exec, 15
    buffer_store_dwordx2 v[8:9], v4, s[44:47], s42 offen
    s_cmp_lg_u32 s2, 0
    s_cbranch_scc1 L_fin
    s_mov_b64 exec, 1
    v_mov_b32 v5, s7
    buffer_store_dword v5, v4, s[32:35], 0 offen""")
    A("L_fin:")
    stamp(7); dump()
    A("L_end:\ns_endpgm")
    A("L_helper:\ns_setprio 3")
    A("""s_and_b32 s4, s2, 7
    s_lshr_b32 s5, s2, 3
    s_lshl_b32 s6, s4, 5
    s_add_u32 s6, s6, s5""")
    A("""s_mul_i32 s48, s4, 28
    s_min_u32 s49, s5, 27
    s_add_u32 s48, s48, s49""")
    A("s_cmp_gt_u32 s3, 1\ns_cbranch_scc1 L_h23")
    A("""v_mul_u32_u24 v4, 896, v3
    v_lshl_add_u32 v4, v2, 3, v4
    v_lshrrev_b32 v5, 1, v0
    v_and_b32 v6, 1, v0
    s_movk_i32 s50, 3584
    s_cmp_eq_u32 s3, 0
    s_cselect_b32 s50, 8192, s50
    s_lshl_b32 s51, s6, 5
    s_lshl_b32 s52, s48, 4
    v_mul_u32_u24 v5, s50, v5
    v_cmp_eq_u32 vcc, 1, v6
    s_mul_i32 s54, s3, 14336
    s_mov_b32 m0, s54
    s_waitcnt lgkmcnt(0)""")
    srd(32,"s8","s9",3584)
    for u in range(7): A(f"buffer_load_dwordx2 v[{64+2*u}:{65+2*u}], v4, s[32:35], 0 offen offset:{128*u}")
    A("""s_add_u32 s36, s14, s51
    s_addc_u32 s37, s15, 0
    s_add_u32 s38, s36, 16
    s_addc_u32 s39, s37, 0
    s_add_u32 s40, s20, s52
    s_addc_u32 s41, s21, 0
    s_add_u32 s42, s22, s52
    s_addc_u32 s43, s23, 0
    s_cmp_eq_u32 s3, 0
    s_cselect_b64 s[36:37], s[36:37], s[40:41]
    s_cselect_b64 s[38:39], s[38:39], s[42:43]
    s_lshl_b32 s50, s50, 5
    v_mov_b32 v8, s36
    v_mov_b32 v9, s37
    v_mov_b32 v10, s38
    v_mov_b32 v11, s39
    v_cndmask_b32 v8, v8, v10, vcc
    v_cndmask_b32 v9, v9, v11, vcc
    v_add_co_u32 v8, vcc, v8, v5
    s_nop 1
    v_addc_co_u32 v9, vcc, 0, v9, vcc""")
    for t in range(14):
        A(f"global_load_lds_dwordx4 v[8:9], off {wnt}")
        if t<13: A("v_add_co_u32 v8, vcc, s50, v8\ns_add_u32 m0, m0, 1024\ns_nop 0\nv_addc_co_u32 v9, vcc, 0, v9, vcc")
    A("L_h23:\ns_waitcnt lgkmcnt(0)\ns_load_dword s7, s[30:31], 0")
    A("""s_mul_i32 s51, s6, 14336
    s_add_u32 s36, s16, s51
    s_addc_u32 s37, s17, 0
    s_sub_u32 s38, %d, s51
    s_mov_b32 s39, 0x20000
    s_mul_i32 s51, s48, 7168
    s_add_u32 s44, s24, s51
    s_addc_u32 s45, s25, 0
    s_sub_u32 s46, %d, s51
    s_cmp_lt_u32 s5, 28
    s_cselect_b32 s46, s46, 0
    s_mov_b32 s47, 0x20000
    s_lshl_b32 s51, s3, 8
    v_lshl_add_u32 v5, v2, 4, s51
    v_mul_u32_u24 v6, 1792, v3
    v_add_u32 v7, v5, v6
    v_add_u32 v5, v7, v6""" % (4096*896, 1792*896))
    for k in range(4): A(f"buffer_load_dwordx4 v[{24+4*k}:{27+4*k}], v5, s[36:39], 0 offen offset:{896*k} nt")
    for k in range(2): A(f"buffer_load_dwordx4 v[{40+4*k}:{43+4*k}], v7, s[44:47], 0 offen offset:{896*k} nt")
    srd(56,"s30","s31",WSN)
    masks(16,2,5)
    A("s_cmp_eq_u32 s3, 2\ns_cbranch_scc1 L_h2\ns_cmp_eq_u32 s3, 3\ns_cbranch_scc1 L_hb1")
    A("s_waitcnt vmcnt(20)")
    stamp(1)
    X=80
    for u in range(14): A(f"v_lshlrev_b32 v{X+2*u}, 16, v{64+u}\nv_and_b32 v{X+2*u+1}, 0xffff0000, v{64+u}")
    A(f"v_pk_add_f32 v[8:9], v[{X}:{X+1}], v[{X+2}:{X+3}]")
    for u in range(2,14): A(f"v_pk_add_f32 v[8:9], v[8:9], v[{X+2*u}:{X+2*u+1}]")
    A("v_add_f32 v8, v8, v9")
    def rowred(r):
        for m in (8,4,2,1): A(f"s_nop 1\nv_add_f32_dpp v{r}, v{r}, v{r} row_ror:{m} {DPP}")
    rowred(8)
    A("v_mul_f32 v8, 0x3b124925, v8\nv_mov_b32 v10, 0\nv_mov_b32 v11, 0")
    for u in range(14):
        A(f"v_sub_f32 v12, v{X+2*u}, v8\nv_sub_f32 v13, v{X+2*u+1}, v8\nv_fmac_f32 v10, v12, v12\nv_fmac_f32 v11, v13, v13")
    A("v_add_f32 v10, v10, v11")
    rowred(10)
    A("""v_mul_f32 v10, 0x3b124925, v10
    v_cvt_pk_bf16_f32 v8, v8, v10
    v_and_b32 v10, 0xffff0000, v8
    v_lshlrev_b32 v8, 16, v8
    v_add_f32 v10, 0x3727c5ac, v10
    v_cvt_pk_bf16_f32 v10, v10, v10
    v_and_b32 v10, 0xffff0000, v10
    v_sqrt_f32 v10, v10
    s_nop 0
    v_cvt_pk_bf16_f32 v10, v10, v10
    v_and_b32 v10, 0xffff0000, v10
    v_rcp_f32 v10, v10
    s_mul_i32 s55, s3, 3584
    v_add_u32 v4, s55, v4""")
    for u in range(14):
        a,b=X+2*u,X+2*u+1
        A(f"v_sub_f32 v{a}, v{a}, v8\nv_sub_f32 v{b}, v{b}, v8\nv_cvt_pk_bf16_f32 v{a}, v{a}, v{b}\nv_and_b32 v{b}, 0xffff0000, v{a}\nv_lshlrev_b32 v{a}, 16, v{a}\nv_mul_f32 v{a}, v{a}, v10\nv_mul_f32 v{b}, v{b}, v10\nv_cvt_pk_bf16_f32 v{64+u}, v{a}, v{b}")
    for u in range(7): A(f"ds_write_b64 v4, v[{64+2*u}:{65+2*u}] offset:{L_XN+128*u}")
    A("""v_and_b32 v5, 3, v2
    v_mul_u32_u24 v5, 896, v5
    v_lshl_add_u32 v5, v3, 4, v5
    v_add_u32 v5, s55, v5
    v_lshlrev_b32 v6, 3, v2
    v_lshl_add_u32 v6, v3, 8, v6
    v_add_u32 v6, s54, v6
    s_waitcnt lgkmcnt(0)""")
    for t in range(14): A(f"ds_read_b128 v[{64+4*t}:{67+4*t}], v5 offset:{L_XN+64*t}")
    A("v_mov_b32 v8, 0\nv_mov_b32 v9, 0\nv_mov_b32 v10, 0\nv_mov_b32 v11, 0\ns_waitcnt vmcnt(6)")
    stamp(2)
    for t in range(14): A(f"ds_read_b64_tr_b16 v[{128+4*t}:{129+4*t}], v6 offset:{1024*t}\nds_read_b64_tr_b16 v[{130+4*t}:{131+4*t}], v6 offset:{1024*t+128}")
    A("s_waitcnt lgkmcnt(0)")
    for t in range(14): A(f"v_mfma_f32_16x16x32_bf16 v[8:11], v[{64+4*t}:{67+4*t}], v[{128+4*t}:{131+4*t}], v[8:11]")
    A("""v_cmp_eq_u32 vcc, 1, v3
    v_cmp_eq_u32 s[40:41], 2, v3
    v_cmp_eq_u32 s[42:43], 3, v3
    s_add_u32 s7, s7, 1
    s_and_b32 s52, s7, 0xffff
    s_nop 4
    v_cndmask_b32 v8, v8, v9, vcc
    v_cndmask_b32 v8, v8, v10, s[40:41]
    v_cndmask_b32 v8, v8, v11, s[42:43]
    v_cvt_pk_bf16_f32 v8, v8, v8
    v_and_b32 v8, 0xffff0000, v8
    s_cmp_eq_u32 s3, 1
    s_cbranch_scc1 L_h1""")
    A(f"""v_or_b32 v8, s52, v8
    v_lshlrev_b32 v5, 14, v3
    v_lshl_add_u32 v5, v2, 2, v5
    s_lshl_b32 s51, s6, 6
    s_add_u32 s51, s51, {QG}
    buffer_store_dword v8, v5, s[56:59], s51 offen sc1""")
    stamp(3)
    A("s_branch L_hb1x")
    A(f"""L_h1:
    v_mul_f32 v9, 0xbfb8aa3b, v8
    v_exp_f32 v9, v9
    v_mov_b32_dpp v10, v8 row_ror:8 {DPP}
    v_add_f32 v9, 1.0, v9
    v_rcp_f32 v9, v9
    v_lshlrev_b32 v5, 2, v0
    v_mul_f32 v9, v9, v8
    v_cvt_pk_bf16_f32 v9, v9, v9
    v_and_b32 v9, 0xffff0000, v9
    v_mul_f32 v9, v9, v10
    v_cvt_pk_bf16_f32 v9, v9, v9
    ds_write_b32 v5, v9 offset:{L_H}
    s_branch L_hb1x""")
    A(f"""L_h2:
    s_waitcnt lgkmcnt(0)
    s_add_u32 s7, s7, 1
    s_and_b32 s52, s7, 0xffff
    s_and_b32 s51, s2, 31
    s_lshl_b32 s51, s51, 11
    s_add_u32 s51, s51, {QG}
    v_lshlrev_b32 v5, 4, v0
    v_lshlrev_b32 v6, 3, v0
    s_mov_b32 s53, 0x07060302""")
    poll("L_pq",[f"buffer_load_dwordx4 v[{8+4*u}:{11+4*u}], v5, s[56:59], s51 offen offset:{1024*u} sc1" for u in range(2)],list(range(8,16)),"s52",0xffff,7)
    stamp(3)
    A(f"""v_perm_b32 v8, v9, v8, s53
    v_perm_b32 v9, v11, v10, s53
    v_perm_b32 v10, v13, v12, s53
    v_perm_b32 v11, v15, v14, s53
    ds_write_b64 v6, v[8:9] offset:{L_Q}
    ds_write_b64 v6, v[10:11] offset:{L_Q+512}
    s_branch L_hb1x
    L_hb1:
    s_waitcnt lgkmcnt(0)
    s_add_u32 s7, s7, 1
    L_hb1x:
    s_waitcnt lgkmcnt(0)
    s_barrier""")
    A(f"""s_setprio 0
    v_lshrrev_b32 v4, 3, v2
    v_lshlrev_b32 v5, 6, v4
    v_lshl_add_u32 v5, v3, 3, v5
    ds_read_b64 v[8:9], v5 offset:{L_H}
    ds_read_b64 v[10:11], v5 offset:{L_H+128}
    s_and_b32 s41, s7, {TAGM}
    s_mov_b32 s43, {~TAGM&0xffffffff}
    s_waitcnt lgkmcnt(0) vmcnt(0)""")
    for q in range(4):
        for k in range(4): A(f"v_and_b32 v{64+4*q+k}, v{8+q}, v{16+k}")
    A("""s_nop 1
    v_mfma_f32_16x16x32_bf16 v[48:51], v[64:67], v[40:43], 0
    v_mfma_f32_16x16x32_bf16 v[52:55], v[72:75], v[40:43], 0
    v_mfma_f32_16x16x32_bf16 v[48:51], v[68:71], v[44:47], v[48:51]
    v_mfma_f32_16x16x32_bf16 v[52:55], v[76:79], v[44:47], v[52:55]""")
    A(f"""v_and_b32 v5, 7, v2
    v_lshl_add_u32 v4, v4, 6, v5
    s_lshl_b32 s51, s4, 4
    s_lshr_b32 s52, s5, 4
    s_add_u32 s51, s51, s52
    v_lshl_add_u32 v4, v4, 1, s51
    v_lshlrev_b32 v5, 3, v4
    v_lshlrev_b32 v6, 10, v4
    v_lshl_add_u32 v6, v3, 4, v6
    s_and_b32 s52, s5, 15
    s_lshl_b32 s52, s52, 6
    s_add_u32 s52, s52, {P1}
    s_add_u32 s53, s52, {256*1024}
    s_and_b32 s54, s2, 31
    s_lshl_b32 s54, s54, 3
    s_lshr_b32 s55, s2, 5
    s_add_u32 s54, s54, s55
    s_mov_b32 s42, {ST}
    s_barrier
    s_barrier
    s_cmp_lg_u32 s3, 3
    s_cbranch_scc1 L_st
    v_lshlrev_b32 v7, 4, v0
    s_mov_b64 exec, 3
    ds_read_b128 v[8:11], v7 offset:{L_MX}
    ds_read_b128 v[12:15], v7 offset:{L_LS}
    v_lshlrev_b32 v7, 3, v0
    s_lshl_b32 s55, s54, 4
    s_add_u32 s55, s55, {ST}
    s_waitcnt lgkmcnt(0)
    v_max3_f32 v8, v8, v9, v10
    v_add_f32 v12, v12, v13
    v_add_f32 v14, v14, v15
    v_max_f32 v8, v8, v11
    v_add_f32 v9, v12, v14
    v_or_b32 v8, s41, v8
    v_and_b32 v9, s43, v9
    v_or_b32 v9, s41, v9
    buffer_store_dwordx2 v[8:9], v7, s[56:59], s55 offen sc1
    s_mov_b64 exec, -1
    L_st:""")
    poll("L_ps",["s_sleep 8"]+[f"buffer_load_dwordx2 v[{8+2*u}:{9+2*u}], v5, s[56:59], s42 offen offset:{2048*u} sc1" for u in range(2)],[8,9,10,11],"s41",TAGM,7)
    stamp(4)
    for r in range(8,12): A(f"v_and_b32 v{r}, s43, v{r}")
    A("v_mov_b32 v12, v8\nv_mov_b32 v13, v10\ns_nop 0")
    red8("max",[12,13])
    A(f"""s_mov_b32 s55, {CEXP}
    v_sub_f32 v8, v8, v12
    v_sub_f32 v10, v10, v13
    v_mul_f32 v8, s55, v8
    v_mul_f32 v10, s55, v10
    v_exp_f32 v8, v8
    v_exp_f32 v10, v10
    s_nop 0
    v_mul_f32 v9, v9, v8
    v_mul_f32 v11, v11, v10
    s_nop 0""")
    red8("add",[9,11])
    A("""v_rcp_f32 v9, v9
    v_rcp_f32 v11, v11
    s_nop 0
    v_mul_f32 v20, v8, v9
    v_mul_f32 v21, v10, v11""")
    A(f"""v_lshrrev_b32 v7, 2, v0
    v_lshlrev_b32 v7, 14, v7
    v_and_b32 v8, 3, v0
    v_lshl_add_u32 v7, v8, 4, v7
    s_lshl_b32 s48, s3, 19
    s_lshl_b32 s49, s2, 6
    s_add_u32 s48, s48, s49
    s_add_u32 s48, s48, {P2}
    s_add_u32 s49, s48, {16*16384}
    v_lshlrev_b32 v22, 4, v0
    s_lshl_b32 s55, s54, 11
    s_lshl_b32 s51, s3, 10
    s_add_u32 s55, s55, s51
    s_add_u32 s55, s55, {P1}
    v_add_u32 v23, s51, v22
    s_setprio 3
    s_barrier
    s_cmp_gt_u32 s3, 1
    s_cbranch_scc1 L_t3""")
    for u in range(4): A(f"ds_read_b128 v[{64+4*u}:{67+4*u}], v23 offset:{L_PART+2048*u}")
    A("""s_waitcnt lgkmcnt(2)
    v_pk_add_f32 v[64:65], v[64:65], v[68:69]
    v_pk_add_f32 v[66:67], v[66:67], v[70:71]
    s_waitcnt lgkmcnt(0)
    v_pk_add_f32 v[72:73], v[72:73], v[76:77]
    v_pk_add_f32 v[74:75], v[74:75], v[78:79]
    v_mov_b32 v8, s41
    v_pk_add_f32 v[64:65], v[64:65], v[72:73]
    v_pk_add_f32 v[66:67], v[66:67], v[74:75]""")
    for r in range(64,68): A(f"v_and_or_b32 v{r}, v{r}, s43, v8")
    A("buffer_store_dwordx4 v[64:67], v22, s[56:59], s55 offen sc1")
    A("L_t3:")
    stamp(5)
    poll("L_p1",["buffer_load_dwordx4 v[8:11], v6, s[56:59], s52 offen sc1","buffer_load_dwordx4 v[12:15], v6, s[56:59], s53 offen sc1"],list(range(8,16)),"s41",TAGM,5)
    stamp(6)
    for r in range(8,16): A(f"v_and_b32 v{r}, s43, v{r}")
    for r in range(8,16): A(f"v_mul_f32 v{r}, v{r}, v{20+(r-8)//4}")
    red8("add",list(range(8,16)))
    for r in range(8,16): A(f"v_cvt_pk_bf16_f32 v{r}, v{r}, v{r}")
    order=[(0,0),(1,0),(0,1),(1,1),(0,2),(1,2),(0,3),(1,3)]
    def mk(i):
        bp,kg=order[i]
        for k in range(4): A(f"v_and_b32 v{80+4*i+k}, v{8+4*bp+kg}, v{16+k}")
    mk(0)
    for i in range(8):
        bp,kg=order[i]
        if i<7: mk(i+1)
        else: A("s_nop 1")
        A(f"v_mfma_f32_16x16x32_bf16 v[{48+4*bp}:{51+4*bp}], v[{80+4*i}:{83+4*i}], v[{24+4*kg}:{27+4*kg}], v[{48+4*bp}:{51+4*bp}]")
    A("""v_mov_b32 v8, s41
    s_cmp_eq_u32 s3, 3
    s_cselect_b32 s50, 0x00ff00ff, -1
    s_mov_b32 exec_lo, s50
    s_mov_b32 exec_hi, s50
    s_nop 2""")
    for r in range(48,52): A(f"v_and_or_b32 v{r}, v{r}, s43, v8")
    A("buffer_store_dwordx4 v[48:51], v7, s[56:59], s48 offen sc1")
    for r in range(52,56): A(f"v_and_or_b32 v{r}, v{r}, s43, v8")
    A("buffer_store_dwordx4 v[52:55], v7, s[56:59], s49 offen sc1")
    stamp(7); dump()
    A("s_endpgm")
    L.append(f'.section .rodata,"a"\n.p2align 6\n.amdhsa_kernel {KN}\n  .amdhsa_next_free_vgpr 256\n  .amdhsa_next_free_sgpr 96\n  .amdhsa_accum_offset 256\n  .amdhsa_group_segment_fixed_size 0\n  .amdhsa_kernarg_size 96\n  .amdhsa_user_sgpr_count 2\n  .amdhsa_user_sgpr_kernarg_segment_ptr 1\n  .amdhsa_system_sgpr_workgroup_id_x 1\n.end_amdhsa_kernel')
    return "\n".join(L)+"\n"
if __name__=="__main__":
    open("k_diag.s","w").write(gen(diag=True))
    open("k.s","w").write(gen())
```

```python
import sys
KN = "parallel_sum__sliding_block_cached__swiglu_ffn__decode_kernel"
HDR = open("parallel_sum__sliding_block_cached__swiglu_ffn__decode.s.ref").read().split("; Override launch")[0]
QG, HG, ST, P1, P2, WSN = 0x10000, 0x30000, 0x50000, 0x80000, 0x100000, 0x400000
L_TILE, L_XN, L_Q, L_H, L_MX, L_LS, L_RED, L_PART, L_TOT = 0, 28672, 32256, 33280, 34304, 34336, 0, 34816, 43008
TAGM = 0x3ff
TAGQ = 0x3f
GO, GO2 = 0x800, 0x900
CEXP = 0x3db8aa3b
DPP = "row_mask:0xf bank_mask:0xf"
def gen(diag=False, NS=24, INFL=3, wnt="nt", spin=1<<20, B0=0, late2=1, D=3, CR=4, sl1=0, abl=0, PB=12, SB=52, sl2=0, hold=0, pre=0, pm=1, ack=0, pm2=0, prew=0, HB=60, HC=63, go2=1, N=0, NP=0, NV=0):
    L=[];
    def A(s):
        for x in s.split("\n"):
            x=x.strip()
            if x: L.append(x if x.endswith(":") else "    "+x)
    def stamp(k, early=False):
        if st and k in (4,5,6) and not early: return
        if early and not st: return
        if diag: A(f"s_memrealtime s[{64+2*k}:{65+2*k}]")
    def dump():
        if not diag: return
        A("s_mov_b64 exec, -1\ns_waitcnt lgkmcnt(0) vmcnt(0)")
        A("s_lshl_b32 s60, s2, 3\ns_add_u32 s60, s60, s3\ns_lshl_b32 s60, s60, 5\ns_add_u32 s60, s60, 0x10000000")
        A("s_add_u32 s60, s30, s60\ns_addc_u32 s61, s31, 0")
        for k in range(8): A(f"v_mov_b32 v{8+k}, s{64+2*k}")
        A("v_mov_b32 v1, 0\nglobal_store_dwordx4 v1, v[8:11], s[60:61]\nglobal_store_dwordx4 v1, v[12:15], s[60:61] offset:16")
    def srd(d, lo, hi, n): A(f"s_mov_b32 s{d}, {lo}\ns_mov_b32 s{d+1}, {hi}\ns_mov_b32 s{d+2}, {n}\ns_mov_b32 s{d+3}, 0x20000")
    def masks(base, vi, vt):
        A(f"v_and_b32 v{vt}, 1, v{vi}\nv_lshlrev_b32 v{vt}, 4, v{vt}\nv_mov_b32 v{base+3}, 0xffff\nv_lshlrev_b32 v{base+3}, v{vt}, v{base+3}")
        A(f"v_bfe_u32 v{vt}, v{vi}, 1, 2")
        for k in range(4):
            A(f"v_cmp_eq_u32 vcc, {k}, v{vt}\ns_nop 1\nv_cndmask_b32 v{base+k}, 0, v{base+3}, vcc")
    def poll(name, loads, regs, tagreg, mask, tmp):
        A(f"s_mov_b32 s40, {spin}\n{name}:")
        for x in loads: A(x)
        A("s_waitcnt vmcnt(0)")
        A(f"v_xor_b32 v{tmp}, {tagreg}, v{regs[0]}")
        for r in regs[1:]: A(f"v_bitop3_b32 v{tmp}, v{r}, {tagreg}, v{tmp} bitop3:0xbe")
        A(f"v_and_b32 v{tmp}, {mask}, v{tmp}\nv_cmp_ne_u32 vcc, 0, v{tmp}")
        A(f"s_sub_u32 s40, s40, 1\ns_cbranch_scc1 {name}_x\ns_cbranch_vccnz {name}\n{name}_x:")
    def mpoll(name, loads, tagreg, mask, tmp, sl=0):
        P=lambda u:f"s[{80+2*u}:{81+2*u}]"
        for u in range(len(loads)): A(f"s_mov_b64 {P(u)}, -1")
        A(f"s_mov_b32 s40, {spin}")
        if sl: A(f"s_branch {name}_f\n{name}:\ns_sleep {sl}\n{name}_f:")
        else: A(f"{name}:")
        for u,(x,regs) in enumerate(loads):
            A(f"s_mov_b64 exec, {P(u)}")
            if len(loads)>1: A(f"s_cbranch_execz {name}_s{u}\n{x}\n{name}_s{u}:")
            else: A(x)
        A("s_sub_u32 s40, s40, 1\ns_cselect_b64 s[90:91], 0, -1")
        for u,(x,regs) in enumerate(loads):
            if len(loads)>1: A(f"s_mov_b64 exec, {P(u)}")
            if u==0: A("s_waitcnt vmcnt(0)")
            A(f"v_xor_b32 v{tmp}, {tagreg}, v{regs[0]}")
            for r in regs[1:]: A(f"v_bitop3_b32 v{tmp}, v{r}, {tagreg}, v{tmp} bitop3:0xbe")
            if mask!=-1: A(f"v_and_b32 v{tmp}, {mask}, v{tmp}")
            A(f"v_cmp_ne_u32 {P(u)}, 0, v{tmp}")
        if len(loads)==1: A(f"s_and_b64 s[88:89], {P(0)}, s[90:91]")
        else:
            A(f"s_or_b64 s[88:89], {P(0)}, {P(1)}")
            for u in range(2,len(loads)): A(f"s_or_b64 s[88:89], s[88:89], {P(u)}")
            A("s_and_b64 s[88:89], s[88:89], s[90:91]")
        A(f"s_cbranch_scc1 {name}\ns_mov_b64 exec, -1")
    def fpoll(name, vaddr, srdr, off, r):
        A(f"s_movk_i32 s40, 2048\n{name}:\nbuffer_load_dword v{r}, v{vaddr}, {srdr}, 0 offen offset:{off} sc1\ns_sub_u32 s40, s40, 1\ns_cbranch_scc1 {name}_x\ns_waitcnt vmcnt(0)\nv_cmp_ne_u32 vcc, s7, v{r}\ns_cbranch_vccnz {name}\n{name}_x:")
    def red8(op, regs):
        for m in ("row_half_mirror","quad_perm:[1,0,3,2]","quad_perm:[2,3,0,1]"):
            if len(regs)<3: A(f"s_nop {2-len(regs)}")
            for r in regs: A(f"v_{op}_f32_dpp v{r}, v{r}, v{r} {m} {DPP}")
    def swapred(op, regs, tmps):
        for sw in ("v_permlane16_swap_b32","v_permlane32_swap_b32"):
            for r,t in zip(regs,tmps): A(f"v_mov_b32 v{t}, v{r}")
            A("s_nop 1")
            for r,t in zip(regs,tmps): A(f"{sw} v{r}, v{t}")
            A("s_nop 1")
            for r,t in zip(regs,tmps): A(f"v_{op}_f32 v{r}, v{r}, v{t}")
    L.append(HDR.rstrip())
    L.append(f"; @launch grid=(256,1,1) block=(512,1,1) lds={L_TOT}")
    L.append(f'.amdgcn_target "amdgcn-amd-amdhsa--gfx950"\n.text\n.globl {KN}\n.p2align 8\n.type {KN},@function\n{KN}:')
    if diag:
        for k in range(8): A(f"s_mov_b64 s[{64+2*k}:{65+2*k}], 0")
    stamp(0)
    if pad and not diag: A("s_memrealtime s[64:65]")
    A("""s_load_dwordx16 s[8:23], s[0:1], 0
    s_load_dwordx8 s[24:31], s[0:1], 64
    s_cmpk_ge_u32 s2, 256
    s_cbranch_scc1 L_end
    v_lshrrev_b32 v1, 6, v0
    v_and_b32 v0, 63, v0
    v_readfirstlane_b32 s3, v1
    v_and_b32 v2, 15, v0
    v_lshrrev_b32 v3, 4, v0
    s_cmp_lt_u32 s3, 4
    s_cbranch_scc1 L_helper""")
    A("""s_and_b32 s4, s2, 31
    s_lshl_b32 s4, s4, 23
    s_lshr_b32 s5, s2, 5
    s_lshl_b32 s5, s5, 18
    s_add_u32 s4, s4, s5
    s_lshl_b32 s5, s3, 11
    s_add_u32 s4, s4, s5
    s_add_u32 s4, s4, %d
    s_lshr_b32 s6, s2, 3
    s_lshl_b32 s6, s6, 13
    v_lshlrev_b32 v1, 4, v2
    v_lshl_add_u32 v1, v3, 9, v1
    s_mov_b32 s34, 0x40000
    s_mov_b32 s35, 0x20000
    s_mov_b32 s38, 0x40000
    s_mov_b32 s39, 0x20000
    s_waitcnt lgkmcnt(0)
    s_add_u32 s32, s10, s4
    s_addc_u32 s33, s11, 0
    s_add_u32 s36, s12, s4
    s_addc_u32 s37, s13, 0""" % (12288*512-4*2048))
    RB=256-8*NS
    def issueh(h):
        n=h//2; sl=RB+8*(n%NS)+4*(h%2); sr="s[32:35]" if n<32 else "s[36:39]"
        A(f"buffer_load_dwordx4 v[{sl}:{sl+3}], v1, {sr}, s6 offen offset:{256*(h%2)} nt")
        if h%2: A("s_add_u32 s6, s6, 0x2000\ns_and_b32 s6, s6, 0x3ffff")
    for h in range(2*NS):
        n=h//2
        if h==0: stamp(4,True)
        if h%2==0 and (n==B0 or n==PB): A("s_barrier")
        if h==0: stamp(5,True)
        if h==NP+1: stamp(6,True)
        if NP:
            if h>=NP: A(f"s_waitcnt vmcnt({NP-1})")
        elif INFL and n>=INFL and h%2==0: A(f"s_waitcnt vmcnt({2*INFL-2})")
        issueh(h)
        if h==3:
            A("s_load_dword s7, s[30:31], 0")
            A(f"v_lshrrev_b32 v4, 3, v2\nv_lshlrev_b32 v4, 9, v4\nv_lshl_add_u32 v4, v2, 4, v4\nv_xor_b32 v5, 0x200, v4")
    stamp(1)
    A("s_waitcnt lgkmcnt(0)\ns_barrier")
    A(f"ds_read_b128 v[8:11], v4 offset:{L_Q}\nds_read_b128 v[12:15], v4 offset:{L_Q+256}\nds_read_b128 v[16:19], v5 offset:{L_Q}\nds_read_b128 v[20:23], v5 offset:{L_Q+256}")
    A("s_add_u32 s7, s7, 1\ns_waitcnt lgkmcnt(0)")
    stamp(2)
    SC=24
    def fin(n):
        u,w=(4,5) if n%2==0 else (6,7); s=SC+n
        return [f"v_add_f32_dpp v{s}, v{w}, v{u} row_ror:8 {DPP}",
                f"v_add_f32_dpp v{s}, v{s}, v{s} row_half_mirror {DPP}",
                f"v_add_f32_dpp v{s}, v{s}, v{s} quad_perm:[1,0,3,2] {DPP}",
                f"v_add_f32_dpp v{s}, v{s}, v{s} quad_perm:[2,3,0,1] {DPP}",
                f"v_cvt_pk_bf16_f32 v{s}, v{s}, v{s}",
                f"v_and_b32 v{s}, 0xffff0000, v{s}"]
    def issuedh(h):
        if N: return min(128, max(h+(NV if NV and h>=64 else N), 2*NS+h//CR))
        n=h//2; return 2*min(64, max(n+D, NS+n//CR))
    def waith(h):
        if N: A(f"s_waitcnt vmcnt({issuedh(h)-h-1})")
        elif h%2==0: A(f"s_waitcnt vmcnt({issuedh(h)-h-2})")
    def after(h):
        for m in range(issuedh(h), issuedh(h+1)): issueh(m)
    for n in range(32):
        sl=RB+8*(n%NS); u,w=(4,5) if n%2==0 else (6,7)
        A(f"v_mov_b32 v{u}, 0\nv_mov_b32 v{w}, 0")
        pend=fin(n-1) if n else []
        for d in range(8):
            if d%4==0: waith(2*n+d//4)
            A(f"v_dot2c_f32_bf16 v{u}, v{sl+d}, v{8+d}\nv_dot2c_f32_bf16 v{w}, v{sl+d}, v{16+d}")
            if pend and d>=1: A(pend.pop(0))
            if d%4==3: after(2*n+d//4)
    A("s_nop 2")
    for x in fin(31): A(x+"\ns_nop 1")
    stamp(3)
    A(f"v_max3_f32 v4, v{SC}, v{SC+1}, v{SC+2}\nv_max3_f32 v5, v{SC+3}, v{SC+4}, v{SC+5}")
    for k in range(6,30,4): A(f"v_max3_f32 v4, v4, v{SC+k}, v{SC+k+1}\nv_max3_f32 v5, v5, v{SC+k+2}, v{SC+k+3}")
    A(f"v_max3_f32 v4, v4, v{SC+30}, v{SC+31}\nv_max_f32 v4, v4, v5")
    swapred("max",[4],[5])
    A(f"v_lshrrev_b32 v6, 3, v2\nv_lshlrev_b32 v6, 4, v6\ns_lshl_b32 s4, s3, 2\nv_add_u32 v7, s4, v6")
    A(f"ds_write_b32 v7, v4 offset:{L_MX-16}\ns_waitcnt lgkmcnt(0)\ns_barrier")
    A(f"ds_read_b128 v[8:11], v6 offset:{L_MX}")
    masks(16,2,5)
    for k in range(8): A(f"v_mov_b32 v{56+k}, 0")
    A(f"s_mov_b32 s4, {CEXP}\ns_waitcnt lgkmcnt(0)\nv_max3_f32 v4, v8, v9, v10\nv_max_f32 v4, v4, v11")
    for k in range(32): A(f"v_sub_f32 v{SC+k}, v{SC+k}, v4")
    for k in range(32): A(f"v_mul_f32 v{SC+k}, s4, v{SC+k}")
    for k in range(32): A(f"v_exp_f32 v{SC+k}, v{SC+k}")
    A(f"v_add_f32 v4, v{SC}, v{SC+1}\nv_add_f32 v5, v{SC+2}, v{SC+3}")
    for k in range(4,32,2): A(f"v_add_f32 v4, v4, v{SC+k}\nv_add_f32 v5, v5, v{SC+k+1}")
    A("v_add_f32 v4, v4, v5")
    swapred("add",[4],[5])
    A(f"ds_write_b32 v7, v4 offset:{L_LS-16}")
    for k in range(32): A(f"v_cvt_pk_bf16_f32 v{SC+k}, v{SC+k}, v{SC+k}")
    A("s_waitcnt lgkmcnt(0)\ns_barrier")
    def mkA(n):
        a=8+4*(n%2)
        for k in range(4): A(f"v_and_b32 v{a+k}, v{SC+n}, v{16+k}")
    mkA(0)
    A(f"v_lshrrev_b32 v4, 1, v3\nv_lshlrev_b32 v4, 10, v4\nv_and_b32 v5, 1, v3\nv_lshl_add_u32 v4, v5, 4, v4\nv_lshl_add_u32 v4, v2, 5, v4\ns_lshl_b32 s4, s3, 11\nv_add_u32 v4, s4, v4")
    for n in range(32,64):
        sl=RB+8*(n%NS); a=8+4*(n%2)
        if n==SB: A("s_barrier")
        if n==HB:
            srd(44,"s28","s29",256); srd(48,"s30","s31",WSN)
            A("s_and_b32 s4, s2, 7\ns_lshl_b32 s5, s4, 5\ns_lshl_b32 s4, s4, 2\ns_cmp_lg_u32 s3, 4\ns_cbranch_scc1 L_na\ns_mov_b64 exec, 1\nv_mov_b32 v6, 1\nv_mov_b32 v7, s7\nbuffer_atomic_add v6, off, s[44:47], s5 sc0 sc1\ns_mov_b64 exec, -1\nL_na:")
        if n<63: mkA(n-32+1)
        waith(2*n)
        A(f"v_mfma_f32_16x16x32_bf16 v[56:59], v[{a}:{a+3}], v[{sl}:{sl+3}], v[56:59]")
        after(2*n); waith(2*n+1)
        A(f"v_mfma_f32_16x16x32_bf16 v[60:63], v[{a}:{a+3}], v[{sl+4}:{sl+7}], v[60:63]")
        if n==HC and HB<64:
            assert HC==63
            A(f"v_readfirstlane_b32 s5, v6\ns_cmp_lg_u32 s3, 4\ns_cbranch_scc1 L_nb\ns_and_b32 s5, s5, 31\ns_cmp_lg_u32 s5, 31\ns_cbranch_scc1 L_nb\ns_mov_b64 exec, 1\nbuffer_store_dword v7, off, s[48:51], s4 offset:{GO} sc1\ns_mov_b64 exec, -1\nL_nb:")
        after(2*n+1)
    stamp(4)
    A(f"s_nop 6\nds_write_b128 v4, v[56:59] offset:{L_PART-8192}\nds_write_b128 v4, v[60:63] offset:{L_PART-8192+512}\ns_waitcnt lgkmcnt(0)\ns_barrier")
    if abl: A("s_branch L_fin")
    A("""s_cmp_lg_u32 s3, 4
    s_cbranch_scc1 L_fin
    s_cmpk_ge_u32 s2, 128
    s_cbranch_scc1 L_fin
    s_and_b32 s4, s2, 0x62
    s_cmp_eq_u32 s4, 0x62
    s_cbranch_scc1 L_fin""")
    srd(32,"s30","s31",WSN)
    if pm2: A(f"s_lshr_b32 s4, s2, 5\ns_lshl_b32 s4, s4, 17\ns_and_b32 s5, s2, 31\ns_lshl_b32 s5, s5, 6\ns_add_u32 s4, s4, s5\nv_lshrrev_b32 v1, 2, v0\nv_and_b32 v4, 3, v0\nv_lshlrev_b32 v4, 4, v4\nv_lshl_add_u32 v1, v1, 11, v4")
    else: A("s_lshl_b32 s4, s2, 12\nv_lshlrev_b32 v1, 4, v0")
    for u in range(4): A(f"s_add_u32 s{48+u}, s4, {P2+u*(32768 if pm2 else 1024)}")
    A(f"""
    s_and_b32 s41, s7, {TAGM}""")
    A("""s_bfe_u32 s42, s2, 0x20003
    s_mul_i32 s42, s42, 896
    s_lshr_b32 s43, s2, 5
    s_lshl_b32 s43, s43, 8
    s_add_u32 s42, s42, s43
    s_and_b32 s43, s2, 3
    s_lshl_b32 s43, s43, 6
    s_add_u32 s42, s42, s43
    s_and_b32 s43, s2, 4
    s_lshl_b32 s43, s43, 1
    s_add_u32 s42, s42, s43
    v_and_b32 v4, 3, v0
    v_lshlrev_b32 v4, 4, v4""")
    srd(36,"s8","s9",3584); srd(44,"s26","s27",3584)
    A("buffer_load_dwordx2 v[6:7], v4, s[36:39], s42 offen")
    A(f"s_mov_b32 s43, {~TAGM&0xffffffff}\nv_and_b32 v5, 7, v0\nv_lshlrev_b32 v5, 2, v5\ns_setprio 3\ns_barrier")
    if go2: fpoll("L_g2",5,"s[32:35]",GO2,8)
    stamp(6)
    mpoll("L_p2",[(f"buffer_load_dwordx4 v[{8+4*u}:{11+4*u}], v1, s[32:35], s{48+u} offen sc1",list(range(8+4*u,12+4*u))) for u in range(4)],"s41",TAGM,5,sl2)
    stamp(5)
    for r in range(8,24): A(f"v_and_b32 v{r}, s43, v{r}")
    A("v_pk_add_f32 v[8:9], v[8:9], v[12:13]\nv_pk_add_f32 v[10:11], v[10:11], v[14:15]\nv_pk_add_f32 v[16:17], v[16:17], v[20:21]\nv_pk_add_f32 v[18:19], v[18:19], v[22:23]\nv_pk_add_f32 v[8:9], v[8:9], v[16:17]\nv_pk_add_f32 v[10:11], v[10:11], v[18:19]")
    A("""v_lshlrev_b32 v24, 16, v6
    v_and_b32 v25, 0xffff0000, v6
    v_lshlrev_b32 v26, 16, v7
    v_and_b32 v27, 0xffff0000, v7""")
    for m in ("row_ror:4","row_ror:8"):
        for r in range(8,12): A(f"v_add_f32_dpp v{r}, v{r}, v{r} {m} {DPP}")
    swapred("add",[8,9,10,11],[12,13,14,15])
    A("""v_pk_add_f32 v[8:9], v[8:9], v[24:25]
    v_pk_add_f32 v[10:11], v[10:11], v[26:27]
    v_cvt_pk_bf16_f32 v8, v8, v9
    v_cvt_pk_bf16_f32 v9, v10, v11
    s_mov_b64 exec, 15
    buffer_store_dwordx2 v[8:9], v4, s[44:47], s42 offen
    s_cmp_lg_u32 s2, 0
    s_cbranch_scc1 L_fin
    s_mov_b64 exec, 1
    v_mov_b32 v5, s7
    buffer_store_dword v5, v4, s[32:35], 0 offen""")
    if pad: A(f"L_pad:\ns_memrealtime s[92:93]\ns_waitcnt lgkmcnt(0)\ns_sub_u32 s92, s92, s64\ns_cmp_lt_u32 s92, {pad}\ns_cbranch_scc1 L_pad")
    A("L_fin:")
    stamp(7); dump()
    A("L_end:\ns_endpgm")
    A("L_helper:\ns_setprio 3")
    if abl==1: A("s_waitcnt lgkmcnt(0)\ns_branch L_fin")
    A("""s_and_b32 s4, s2, 7
    s_lshr_b32 s5, s2, 3""")
    A("s_cmp_lg_u32 s3, 0\ns_cbranch_scc1 L_h123n")
    A(f"""v_mul_u32_u24 v4, 896, v3
    v_lshl_add_u32 v4, v2, 3, v4
    v_lshrrev_b32 v5, 3, v0
    v_and_b32 v6, 7, v0
    v_and_b32 v7, 2, v5
    v_xor_b32 v6, v6, v7
    v_lshlrev_b32 v6, 4, v6
    s_mov_b32 m0, 0
    s_mov_b32 s39, 0x20000
    s_cmpk_ge_u32 s2, 240
    s_cbranch_scc1 L_h123n
    s_cmpk_ge_u32 s2, 128
    s_cbranch_scc1 L_tf
    s_movk_i32 s50, 8192
    s_lshr_b32 s54, s5, 3
    s_and_b32 s51, s5, 7
    s_lshl_b32 s52, s4, 3
    s_add_u32 s52, s52, s51
    s_lshl_b32 s52, s52, 7
    s_lshl_b32 s53, s4, 12
    s_lshl_b32 s51, s51, 8
    s_add_u32 s53, s53, s51
    s_lshl_b32 s51, s54, 11
    s_add_u32 s53, s53, s51
    s_add_u32 s53, s53, {QG}
    v_and_b32 v8, 3, v2
    v_lshlrev_b32 v8, 15, v8
    v_lshrrev_b32 v9, 2, v2
    v_lshl_add_u32 v8, v9, 6, v8
    v_lshl_add_u32 v60, v3, 4, v8
    s_waitcnt lgkmcnt(0)
    s_mov_b64 s[36:37], s[14:15]
    s_branch L_tg
    L_tf:
    s_movk_i32 s50, 3584
    s_bfe_u32 s54, s2, 0x10001
    s_bfe_u32 s51, s2, 0x50002
    s_lshl_b32 s52, s51, 7
    s_lshl_b32 s53, s51, 12
    s_and_b32 s51, s2, 1
    s_lshl_b32 s51, s51, 8
    s_add_u32 s53, s53, s51
    s_lshl_b32 s51, s54, 7
    s_add_u32 s53, s53, s51
    s_add_u32 s53, s53, {HG}
    v_and_b32 v8, 3, v2
    v_lshlrev_b32 v8, 5, v8
    v_lshrrev_b32 v9, 2, v2
    v_lshl_add_u32 v8, v9, 10, v8
    v_lshrrev_b32 v9, 1, v3
    v_lshl_add_u32 v8, v9, 9, v8
    v_and_b32 v9, 1, v3
    v_lshl_add_u32 v60, v9, 4, v8
    s_bitcmp1_b32 s2, 0
    s_waitcnt lgkmcnt(0)
    s_cselect_b64 s[36:37], s[22:23], s[20:21]
    L_tg:
    s_mul_i32 s38, s50, 448
    s_mul_i32 s51, s50, 224
    s_mul_i32 s51, s51, s54
    s_add_u32 s52, s52, s51
    v_mul_u32_u24 v5, s50, v5
    s_lshl_b32 s50, s50, 3
    v_add_u32 v5, v5, v6
    v_xor_b32 v6, 64, v5""")
    stamp(4,True)
    srd(32,"s8","s9",3584)
    for u in range(7): A(f"buffer_load_dwordx2 v[{64+2*u}:{65+2*u}], v4, s[32:35], 0 offen offset:{128*u}")
    for t in range(28):
        A(f"buffer_load_dwordx4 v{5+t%2}, s[36:39], s52 offen {wnt} lds")
        if t<27: A("s_add_u32 m0, m0, 1024\ns_add_u32 s52, s52, s50")
    if B0>=0: A("s_barrier")
    A("s_load_dword s7, s[30:31], 0")
    srd(56,"s30","s31",WSN)
    A("s_waitcnt vmcnt(28)")
    stamp(1)
    X=80
    for u in range(14): A(f"v_lshlrev_b32 v{X+2*u}, 16, v{64+u}\nv_and_b32 v{X+2*u+1}, 0xffff0000, v{64+u}")
    A(f"v_pk_add_f32 v[8:9], v[{X}:{X+1}], v[{X+2}:{X+3}]")
    for u in range(2,14): A(f"v_pk_add_f32 v[8:9], v[8:9], v[{X+2*u}:{X+2*u+1}]")
    A("v_add_f32 v8, v8, v9")
    def rowred(r):
        for m in (8,4,2,1): A(f"s_nop 1\nv_add_f32_dpp v{r}, v{r}, v{r} row_ror:{m} {DPP}")
    rowred(8)
    A("v_mul_f32 v8, 0x3b124925, v8\nv_mov_b32 v10, 0\nv_mov_b32 v11, 0")
    for u in range(14):
        A(f"v_sub_f32 v12, v{X+2*u}, v8\nv_sub_f32 v13, v{X+2*u+1}, v8\nv_fmac_f32 v10, v12, v12\nv_fmac_f32 v11, v13, v13")
    A("v_add_f32 v10, v10, v11")
    rowred(10)
    A("""v_mul_f32 v10, 0x3b124925, v10
    v_cvt_pk_bf16_f32 v8, v8, v10
    v_and_b32 v10, 0xffff0000, v8
    v_lshlrev_b32 v8, 16, v8
    v_add_f32 v10, 0x3727c5ac, v10
    v_cvt_pk_bf16_f32 v10, v10, v10
    v_and_b32 v10, 0xffff0000, v10
    v_sqrt_f32 v10, v10
    s_nop 0
    v_cvt_pk_bf16_f32 v10, v10, v10
    v_and_b32 v10, 0xffff0000, v10
    v_rcp_f32 v10, v10
    s_mul_i32 s55, s54, 448""")
    for u in range(14):
        a,b=X+2*u,X+2*u+1
        A(f"v_sub_f32 v{a}, v{a}, v8\nv_sub_f32 v{b}, v{b}, v8\nv_cvt_pk_bf16_f32 v{a}, v{a}, v{b}\nv_and_b32 v{b}, 0xffff0000, v{a}\nv_lshlrev_b32 v{a}, 16, v{a}\nv_mul_f32 v{a}, v{a}, v10\nv_mul_f32 v{b}, v{b}, v10\nv_cvt_pk_bf16_f32 v{64+u}, v{a}, v{b}")
    for u in range(7): A(f"ds_write_b64 v4, v[{64+2*u}:{65+2*u}] offset:{L_XN+128*u}")
    A("""v_and_b32 v5, 3, v2
    v_lshlrev_b32 v6, 3, v5
    v_mul_u32_u24 v5, 896, v5
    v_lshl_add_u32 v5, v3, 4, v5
    v_add_u32 v5, s55, v5
    v_lshrrev_b32 v7, 2, v2
    v_lshl_add_u32 v6, v7, 7, v6
    v_lshl_add_u32 v6, v3, 10, v6
    v_lshrrev_b32 v7, 3, v2
    v_lshl_add_u32 v6, v7, 5, v6
    v_and_b32 v7, 1, v3
    v_lshl_add_u32 v56, v7, 6, v6
    v_xor_b32 v57, 32, v56
    v_xor_b32 v58, 64, v56
    v_xor_b32 v59, 96, v56
    s_waitcnt lgkmcnt(0)""")
    for t in range(7): A(f"ds_read_b128 v[{64+4*t}:{67+4*t}], v5 offset:{L_XN+64*t}")
    A(f"""s_add_u32 s7, s7, 1
    s_and_b32 s41, s7, {TAGQ}
    s_mov_b32 s43, {~TAGQ&0xffffffff}
    v_lshrrev_b32 v7, 2, v2
    v_cmp_eq_u32 vcc, 1, v7
    v_cmp_eq_u32 s[44:45], 2, v7
    v_cmp_eq_u32 s[46:47], 3, v7
    v_mov_b32 v7, s41""")
    def trr(t):
        A(f"s_waitcnt vmcnt({24-4*t})")
        if t==6: stamp(2)
        for c in range(4):
            r=96+16*t+4*c
            A(f"ds_read_b64_tr_b16 v[{r}:{r+1}], v{56+c} offset:{4096*t}\nds_read_b64_tr_b16 v[{r+2}:{r+3}], v{56+c} offset:{4096*t+512}")
    trr(0)
    for t in range(7):
        if t<6: trr(t+1)
        A(f"s_waitcnt lgkmcnt({8 if t<6 and not (diag and t==5) else 0})")
        for c in range(4):
            r=96+16*t+4*c
            A(f"v_mfma_f32_16x16x32_bf16 v[{8+4*c}:{11+4*c}], v[{r}:{r+3}], v[{64+4*t}:{67+4*t}], "+("0" if t==0 else f"v[{8+4*c}:{11+4*c}]"))
    A("s_nop 6")
    for c,m in ((1,"vcc"),(2,"s[44:45]"),(3,"s[46:47]")):
        if c==3: A("s_nop 0")
        for k in range(4): A(f"v_cndmask_b32 v{8+k}, v{8+k}, v{8+4*c+k}, {m}")
    for k in range(4): A(f"v_add_u32 v{8+k}, {(TAGQ+1)//2}, v{8+k}")
    for k in range(4): A(f"v_and_or_b32 v{8+k}, v{8+k}, s43, v7")
    A("buffer_store_dwordx4 v[8:11], v60, s[56:59], s53 offen sc1")
    stamp(3)
    A("s_barrier\ns_branch L_hb1")
    if not reord:
        A("L_h123n:")
        if B0>=0: A("s_barrier")
    A("L_h123:\ns_waitcnt lgkmcnt(0)\ns_load_dword s7, s[30:31], 0")
    srd(56,"s30","s31",WSN)
    A(f"""s_and_b32 s51, s2, 31
    s_lshl_b32 s51, s51, 12
    s_add_u32 s51, s51, {QG}
    v_lshlrev_b32 v5, 4, v0
    v_lshlrev_b32 v6, 3, v0
    s_mov_b32 s43, {~TAGQ&0xffffffff}
    s_waitcnt lgkmcnt(0)
    s_add_u32 s7, s7, 1
    s_and_b32 s41, s7, {TAGQ}
    s_barrier
    s_cmp_lg_u32 s3, 2
    s_cbranch_scc1 L_hb1""")
    mpoll("L_pq",[(f"buffer_load_dwordx4 v[{8+4*u}:{11+4*u}], v5, s[56:59], s51 offen offset:{1024*u} sc1",list(range(8+4*u,12+4*u))) for u in range(4)],"s41",TAGQ,7)
    stamp(3)
    for r in range(8,24): A(f"v_and_b32 v{r}, s43, v{r}")
    for r in range(8,16,2): A(f"v_pk_add_f32 v[{r}:{r+1}], v[{r}:{r+1}], v[{r+8}:{r+9}]")
    A(f"""v_cvt_pk_bf16_f32 v8, v8, v9
    v_cvt_pk_bf16_f32 v9, v10, v11
    v_cvt_pk_bf16_f32 v10, v12, v13
    v_cvt_pk_bf16_f32 v11, v14, v15
    ds_write_b64 v6, v[8:9] offset:{L_Q}
    ds_write_b64 v6, v[10:11] offset:{L_Q+512}
    s_waitcnt lgkmcnt(0)
    L_hb1:
    s_barrier
    s_setprio 0""")
    if abl==2: A("s_branch L_fin")
    A("""s_and_b32 s49, s5, 3
    s_andn2_b32 s5, s5, 3
    s_add_u32 s5, s5, s3
    s_lshl_b32 s6, s4, 5
    s_add_u32 s6, s6, s5
    s_mul_i32 s48, s4, 28
    s_min_u32 s51, s5, 27
    s_add_u32 s48, s48, s51""")
    A("""s_mul_i32 s51, s6, 14336
    s_add_u32 s36, s16, s51
    s_addc_u32 s37, s17, 0
    s_sub_u32 s38, %d, s51
    s_mov_b32 s39, 0x20000
    s_mul_i32 s51, s48, 7168
    s_add_u32 s44, s24, s51
    s_addc_u32 s45, s25, 0
    s_sub_u32 s46, %d, s51
    s_cmp_lt_u32 s5, 28
    s_cselect_b32 s46, s46, 0
    s_mov_b32 s47, 0x20000
    s_lshl_b32 s51, s49, 8
    v_lshl_add_u32 v5, v2, 4, s51
    v_mul_u32_u24 v6, 1792, v3
    v_add_u32 v7, v5, v6
    v_add_u32 v5, v7, v6""" % (4096*896, 1792*896))
    for k in range(24): A(f"v_mov_b32 v{24+k}, 0")
    A("s_cmp_eq_u32 s49, 3\ns_cselect_b32 s50, 0x00ff00ff, -1\ns_mov_b32 exec_lo, s50\ns_mov_b32 exec_hi, s50")
    for k in range(4): A(f"buffer_load_dwordx4 v[{24+4*k}:{27+4*k}], v5, s[36:39], 0 offen offset:{896*k} nt")
    for k in range(2): A(f"buffer_load_dwordx4 v[{40+4*k}:{43+4*k}], v7, s[44:47], 0 offen offset:{896*k} nt")
    A("s_mov_b64 exec, -1")
    masks(16,2,5)
    A(f"""v_and_b32 v5, 31, v0
    v_lshlrev_b32 v5, 4, v5
    s_lshl_b32 s51, s48, 9
    s_add_u32 s51, s51, {HG}""")
    mpoll("L_ph",[("buffer_load_dwordx4 v[8:11], v5, s[56:59], s51 offen sc1",[8,9,10,11])],"s41",TAGQ,7,8)
    for r in range(8,12): A(f"v_and_b32 v{r}, s43, v{r}")
    A("v_and_b32 v5, 1, v0\nv_lshlrev_b32 v5, 4, v5\nv_and_b32 v6, 6, v0\nv_lshl_add_u32 v5, v6, 5, v5\ns_lshl_b32 s51, s3, 8\nv_add_u32 v5, s51, v5")
    for r in range(8,12): A(f"v_add_f32_dpp v{r}, v{r}, v{r} row_ror:8 {DPP}")
    for r in range(8,12): A(f"v_cvt_pk_bf16_f32 v{r}, v{r}, v{r}")
    for r in range(8,12): A(f"v_and_b32 v{r}, 0xffff0000, v{r}")
    for r in range(8,12): A(f"v_mov_b32 v{r+4}, v{r}")
    A("s_nop 1")
    for r in range(8,12): A(f"v_permlane16_swap_b32 v{r}, v{r+4}")
    A("s_nop 1")
    for r in range(8,12): A(f"v_mul_f32 v{r+56}, 0xbfb8aa3b, v{r}")
    for r in range(8,12): A(f"v_exp_f32 v{r+56}, v{r+56}")
    for r in range(8,12): A(f"v_add_f32 v{r+56}, 1.0, v{r+56}")
    for r in range(8,12): A(f"v_rcp_f32 v{r+56}, v{r+56}")
    for r in range(8,12): A(f"v_mul_f32 v{r}, v{r+56}, v{r}")
    for r in range(8,12): A(f"v_cvt_pk_bf16_f32 v{r}, v{r}, v{r}")
    for r in range(8,12): A(f"v_and_b32 v{r}, 0xffff0000, v{r}")
    for r in range(8,12): A(f"v_mul_f32 v{r}, v{r}, v{r+4}")
    for r in range(8,12): A(f"v_cvt_pk_bf16_f32 v{r}, v{r}, v{r}")
    A(f"ds_write_b128 v5, v[8:11] offset:{L_H}\ns_waitcnt lgkmcnt(0)")
    A(f"""v_lshrrev_b32 v4, 3, v2
    v_lshlrev_b32 v5, 6, v4
    v_lshl_add_u32 v5, v3, 3, v5
    v_add_u32 v5, s51, v5
    ds_read_b64 v[8:9], v5 offset:{L_H}
    ds_read_b64 v[10:11], v5 offset:{L_H+128}
    s_and_b32 s41, s7, {TAGM}
    s_mov_b32 s43, {~TAGM&0xffffffff}
    s_waitcnt lgkmcnt(0) vmcnt(0)""")
    for q in range(4):
        for k in range(4): A(f"v_and_b32 v{64+4*q+k}, v{8+q}, v{16+k}")
    A("""s_nop 1
    v_mfma_f32_16x16x32_bf16 v[48:51], v[64:67], v[40:43], 0
    v_mfma_f32_16x16x32_bf16 v[52:55], v[72:75], v[40:43], 0
    v_mfma_f32_16x16x32_bf16 v[48:51], v[68:71], v[44:47], v[48:51]
    v_mfma_f32_16x16x32_bf16 v[52:55], v[76:79], v[44:47], v[52:55]""")
    A(f"""v_and_b32 v5, 7, v2
    v_lshl_add_u32 v4, v4, 6, v5
    s_lshl_b32 s51, s4, 4
    s_lshr_b32 s52, s5, 4
    s_add_u32 s51, s51, s52
    v_lshl_add_u32 v4, v4, 1, s51
    v_lshlrev_b32 v5, 4, v4
    v_lshlrev_b32 v6, {11 if pm else 6}, v2
    v_lshl_add_u32 v6, v3, 4, v6
    s_lshl_b32 s52, s4, 16
    s_lshl_b32 s53, s5, {6 if pm else 11}
    s_add_u32 s52, s52, s53
    s_add_u32 s52, s52, {P1}
    s_add_u32 s62, s52, {32768 if pm else 1024}
    s_and_b32 s54, s2, 31
    s_lshl_b32 s54, s54, 3
    s_lshr_b32 s55, s2, 5
    s_add_u32 s54, s54, s55
    s_lshr_b32 s94, s2, 3
    s_xor_b32 s95, s3, 3
    s_or_b32 s94, s94, s95
    s_lshl_b32 s95, s4, 2
    s_mov_b32 s42, {ST}""")
    A(f"""v_lshrrev_b32 v22, 2, v0
    v_and_b32 v8, 3, v0
    v_lshlrev_b32 v8, 4, v8
    v_lshl_add_u32 v61, v22, {6 if pm2 else 12}, v8
    v_lshl_add_u32 v22, v22, {6 if pm else 11}, v8
    s_lshl_b32 s48, s49, 17
    s_lshl_b32 s51, s3, {10 if pm2 else 16}
    s_add_u32 s48, s48, s51
    s_lshr_b32 s51, s6, 2
    s_lshl_b32 s51, s51, {11 if pm2 else 6}
    s_add_u32 s48, s48, s51
    s_add_u32 s48, s48, {P2}
    s_lshl_b32 s63, s4, 16
    s_lshl_b32 s51, s3, {10 if pm else 15}
    s_add_u32 s63, s63, s51
    s_and_b32 s51, s2, 24
    s_lshr_b32 s53, s2, 5
    s_add_u32 s51, s51, s53
    s_lshl_b32 s51, s51, {11 if pm else 6}
    s_add_u32 s63, s63, s51
    s_add_u32 s63, s63, {P1}
    s_lshl_b32 s51, s3, 10
    v_lshl_add_u32 v23, v0, 4, s51
    v_add_u32 v62, s51, v23""")
    if prew:
        A("s_cmp_gt_u32 s3, 1\ns_cbranch_scc1 L_npw\nv_not_b32 v8, s41\nv_not_b32 v9, s41\nv_not_b32 v10, s41\nv_not_b32 v11, s41")
        if prew&1: A("buffer_store_dwordx4 v[8:11], v22, s[56:59], s63 offen sc1")
        if prew&2: A("buffer_store_dwordx4 v[8:11], v61, s[56:59], s48 offen sc1")
        A("s_waitcnt vmcnt(0)\nL_npw:")
    if pre&1: A("buffer_load_dwordx4 v[8:11], v6, s[56:59], s52 offen sc1\nbuffer_load_dwordx4 v[12:15], v6, s[56:59], s62 offen sc1")
    if pre&2: A(f"s_and_b32 s55, s2, 127\ns_lshl_b32 s55, s55, 2\ns_add_u32 s55, s55, s3\ns_lshl_b32 s55, s55, 10\ns_add_u32 s55, s55, {P2}\nv_lshlrev_b32 v7, 4, v0\nbuffer_load_dwordx4 v[8:11], v7, s[56:59], s55 offen sc1")
    if pre: A("s_waitcnt vmcnt(0)")
    A(f"""s_barrier
    s_barrier
    s_cmp_lg_u32 s3, 3
    s_cbranch_scc1 L_st
    v_lshlrev_b32 v7, 4, v0
    s_mov_b64 exec, 3
    ds_read_b128 v[8:11], v7 offset:{L_MX}
    ds_read_b128 v[12:15], v7 offset:{L_LS}
    s_lshl_b32 s55, s54, 5
    s_add_u32 s55, s55, {ST}
    s_waitcnt lgkmcnt(0)
    v_max3_f32 v8, v8, v9, v10
    v_add_f32 v12, v12, v13
    v_add_f32 v14, v14, v15
    v_max_f32 v8, v8, v11
    v_add_f32 v9, v12, v14
    v_mov_b32 v10, s7
    v_mov_b32 v11, s7
    buffer_store_dwordx4 v[8:11], v7, s[56:59], s55 offen sc1
    s_mov_b64 exec, -1
    L_st:""")
    if abl==3: A("s_branch L_fin")
    A(f"s_mov_b32 s55, {ST+4096}")
    A("s_barrier")
    mpoll("L_ps",[("buffer_load_dwordx4 v[8:11], v5, s[56:59], s42 offen sc1",[10,11]),("buffer_load_dwordx4 v[12:15], v5, s[56:59], s55 offen sc1",[14,15])],"s7",-1,7,8)
    stamp(4)
    A("v_mov_b32 v10, v12\nv_mov_b32 v11, v13")
    A("v_mov_b32 v12, v8\nv_mov_b32 v13, v10\ns_nop 0")
    red8("max",[12,13])
    A(f"""s_mov_b32 s55, {CEXP}
    v_sub_f32 v8, v8, v12
    v_sub_f32 v10, v10, v13
    v_mul_f32 v8, s55, v8
    v_mul_f32 v10, s55, v10
    v_exp_f32 v8, v8
    v_exp_f32 v10, v10
    s_nop 0
    v_mul_f32 v9, v9, v8
    v_mul_f32 v11, v11, v10
    s_nop 0""")
    red8("add",[9,11])
    A("""v_rcp_f32 v9, v9
    v_rcp_f32 v11, v11
    s_nop 0
    v_mul_f32 v20, v8, v9
    v_mul_f32 v21, v10, v11""")
    A(f"""s_setprio 3
    s_barrier
    s_cmp_gt_u32 s3, 1
    s_cbranch_scc1 L_t3""")
    for u in range(4): A(f"ds_read_b128 v[{64+4*u}:{67+4*u}], v23 offset:{L_PART+2048*u}")
    A("""s_waitcnt lgkmcnt(2)
    v_pk_add_f32 v[64:65], v[64:65], v[68:69]
    v_pk_add_f32 v[66:67], v[66:67], v[70:71]
    s_waitcnt lgkmcnt(0)
    v_pk_add_f32 v[72:73], v[72:73], v[76:77]
    v_pk_add_f32 v[74:75], v[74:75], v[78:79]
    v_mov_b32 v8, s41
    v_pk_add_f32 v[64:65], v[64:65], v[72:73]
    v_pk_add_f32 v[66:67], v[66:67], v[74:75]""")
    for r in range(64,68): A(f"v_and_or_b32 v{r}, v{r}, s43, v8")
    if ack: stamp(1)
    A("buffer_store_dwordx4 v[64:67], v22, s[56:59], s63 offen sc1")
    if ack: A("s_waitcnt vmcnt(0)"); stamp(2)
    A("L_t3:")
    if abl==4: A("s_branch L_fin")
    stamp(5)
    if hold: A(f"L_hold:\ns_memrealtime s[92:93]\ns_waitcnt lgkmcnt(0)\ns_sub_u32 s92, s92, s64\ns_cmp_lt_u32 s92, {hold}\ns_cbranch_scc1 L_hold")
    if HB<64:
        A("v_mov_b32 v5, s4\nv_lshlrev_b32 v5, 2, v5")
        fpoll("L_g1",5,"s[56:59]",GO,8)
        if not ack and not st: stamp(1)
    mpoll("L_p1",[("buffer_load_dwordx4 v[8:11], v6, s[56:59], s52 offen sc1",[8,9,10,11]),("buffer_load_dwordx4 v[12:15], v6, s[56:59], s62 offen sc1",[12,13,14,15])],"s41",TAGM,5,sl1)
    stamp(6)
    if go2: A(f"s_cmp_lg_u32 s94, 0\ns_cbranch_scc1 L_ng2\ns_mov_b64 exec, 1\nv_mov_b32 v5, s7\nbuffer_store_dword v5, off, s[56:59], s95 offset:{GO2} sc1\ns_mov_b64 exec, -1\nL_ng2:")
    for r in range(8,16): A(f"v_and_b32 v{r}, s43, v{r}")
    for r in range(8,16): A(f"v_mul_f32 v{r}, v{r}, v{20+(r-8)//4}")
    red8("add",list(range(8,16)))
    for r in range(8,16): A(f"v_cvt_pk_bf16_f32 v{r}, v{r}, v{r}")
    order=[(0,0),(1,0),(0,1),(1,1),(0,2),(1,2),(0,3),(1,3)]
    def mk(i):
        bp,kg=order[i]
        for k in range(4): A(f"v_and_b32 v{80+4*i+k}, v{8+4*bp+kg}, v{16+k}")
    mk(0)
    for i in range(8):
        bp,kg=order[i]
        if i<7: mk(i+1)
        else: A("s_nop 1")
        A(f"v_mfma_f32_16x16x32_bf16 v[{48+4*bp}:{51+4*bp}], v[{80+4*i}:{83+4*i}], v[{24+4*kg}:{27+4*kg}], v[{48+4*bp}:{51+4*bp}]")
    A(f"""v_mov_b32 v8, s41
    s_nop 5
    ds_write_b128 v62, v[48:51] offset:{L_RED}
    ds_write_b128 v62, v[52:55] offset:{L_RED+1024}
    s_waitcnt lgkmcnt(0)
    s_barrier
    s_cmp_gt_u32 s3, 1
    s_cbranch_scc1 L_fin""")
    for u in range(4): A(f"ds_read_b128 v[{64+4*u}:{67+4*u}], v23 offset:{L_RED+2048*u}")
    A("""s_mov_b32 exec_lo, s50
    s_mov_b32 exec_hi, s50
    s_waitcnt lgkmcnt(2)
    v_pk_add_f32 v[64:65], v[64:65], v[68:69]
    v_pk_add_f32 v[66:67], v[66:67], v[70:71]
    s_waitcnt lgkmcnt(0)
    v_pk_add_f32 v[72:73], v[72:73], v[76:77]
    v_pk_add_f32 v[74:75], v[74:75], v[78:79]
    v_pk_add_f32 v[64:65], v[64:65], v[72:73]
    v_pk_add_f32 v[66:67], v[66:67], v[74:75]""")
    for r in range(64,68): A(f"v_and_or_b32 v{r}, v{r}, s43, v8")
    if ack: stamp(3)
    A("buffer_store_dwordx4 v[64:67], v61, s[56:59], s48 offen sc1")
    if ack: A("s_waitcnt vmcnt(0)"); stamp(4)
    stamp(7); dump()
    A("s_endpgm")
    L.append(f'.section .rodata,"a"\n.p2align 6\n.amdhsa_kernel {KN}\n  .amdhsa_next_free_vgpr 256\n  .amdhsa_next_free_sgpr 96\n  .amdhsa_accum_offset 256\n  .amdhsa_group_segment_fixed_size 0\n  .amdhsa_kernarg_size 96\n  .amdhsa_user_sgpr_count 2\n  .amdhsa_user_sgpr_kernarg_segment_ptr 1\n  .amdhsa_system_sgpr_workgroup_id_x 1\n.end_amdhsa_kernel')
    return "\n".join(L)+"\n"
if __name__=="__main__":
    open("k_diag.s","w").write(gen(diag=True))
    open("k.s","w").write(gen())
    for a in sys.argv[1:]:
        kw=eval("dict(%s)"%a); nm=a.replace("=","").replace(",","_").replace("'","").replace("-","m")
        open(f"d_{nm}.s","w").write(gen(diag=True,**kw)); open(f"k_{nm}.s","w").write(gen(**kw))
```

```python
import sys
KN = "parallel_sum__sliding_block_cached__swiglu_ffn__decode_kernel"
HDR = open("parallel_sum__sliding_block_cached__swiglu_ffn__decode.s.ref").read().split("; Override launch")[0]
QG, HG, ST, P1, P2, WSN = 0x10000, 0x30000, 0x50000, 0x80000, 0x100000, 0x400000
L_RK = 34400
L_TILE, L_XN, L_Q, L_H, L_MX, L_LS, L_RED, L_PART, L_TOT = 0, 28672, 32256, 33280, 34304, 34336, 0, 34816, 43008
TAGM = 0x3ff
TAGQ = 0x3f
GO, GO2 = 0x800, 0x900
CEXP = 0x3db8aa3b
DPP = "row_mask:0xf bank_mask:0xf"
def gen(diag=False, NS=24, INFL=3, wnt="nt", spin=1<<20, B0=0, late2=1, D=3, CR=4, sl1=0, abl=0, PB=12, SB=52, sl2=0, hold=0, pre=0, pm=1, ack=0, pm2=0, prew=0, HB=59, HC=63, go2=1, N=0, NP=0, NV=0):
    L=[];
    def A(s):
        for x in s.split("\n"):
            x=x.strip()
            if x: L.append(x if x.endswith(":") else "    "+x)
    def stamp(k, early=False):
        if st and k in (4,5,6) and not early: return
        if early and not st: return
        if diag: A(f"s_memrealtime s[{64+2*k}:{65+2*k}]")
    def dump():
        if not diag: return
        A("s_mov_b64 exec, -1\ns_waitcnt lgkmcnt(0) vmcnt(0)")
        A("s_lshl_b32 s60, s2, 3\ns_add_u32 s60, s60, s3\ns_lshl_b32 s60, s60, 5\ns_add_u32 s60, s60, 0x10000000")
        A("s_add_u32 s60, s30, s60\ns_addc_u32 s61, s31, 0")
        for k in range(8): A(f"v_mov_b32 v{8+k}, s{64+2*k}")
        A("v_mov_b32 v1, 0\nglobal_store_dwordx4 v1, v[8:11], s[60:61]\nglobal_store_dwordx4 v1, v[12:15], s[60:61] offset:16")
    def srd(d, lo, hi, n): A(f"s_mov_b32 s{d}, {lo}\ns_mov_b32 s{d+1}, {hi}\ns_mov_b32 s{d+2}, {n}\ns_mov_b32 s{d+3}, 0x20000")
    def masks(base, vi, vt):
        A(f"v_and_b32 v{vt}, 1, v{vi}\nv_lshlrev_b32 v{vt}, 4, v{vt}\nv_mov_b32 v{base+3}, 0xffff\nv_lshlrev_b32 v{base+3}, v{vt}, v{base+3}")
        A(f"v_bfe_u32 v{vt}, v{vi}, 1, 2")
        for k in range(4):
            A(f"v_cmp_eq_u32 vcc, {k}, v{vt}\ns_nop 1\nv_cndmask_b32 v{base+k}, 0, v{base+3}, vcc")
    def poll(name, loads, regs, tagreg, mask, tmp):
        A(f"s_mov_b32 s40, {spin}\n{name}:")
        for x in loads: A(x)
        A("s_waitcnt vmcnt(0)")
        A(f"v_xor_b32 v{tmp}, {tagreg}, v{regs[0]}")
        for r in regs[1:]: A(f"v_bitop3_b32 v{tmp}, v{r}, {tagreg}, v{tmp} bitop3:0xbe")
        A(f"v_and_b32 v{tmp}, {mask}, v{tmp}\nv_cmp_ne_u32 vcc, 0, v{tmp}")
        A(f"s_sub_u32 s40, s40, 1\ns_cbranch_scc1 {name}_x\ns_cbranch_vccnz {name}\n{name}_x:")
    def mpoll(name, loads, tagreg, mask, tmp, sl=0):
        P=lambda u:f"s[{80+2*u}:{81+2*u}]"
        for u in range(len(loads)): A(f"s_mov_b64 {P(u)}, -1")
        A(f"s_mov_b32 s40, {spin}")
        if sl: A(f"s_branch {name}_f\n{name}:\ns_sleep {sl}\n{name}_f:")
        else: A(f"{name}:")
        for u,(x,regs) in enumerate(loads):
            A(f"s_mov_b64 exec, {P(u)}")
            if len(loads)>1: A(f"s_cbranch_execz {name}_s{u}\n{x}\n{name}_s{u}:")
            else: A(x)
        A("s_sub_u32 s40, s40, 1\ns_cselect_b64 s[90:91], 0, -1")
        for u,(x,regs) in enumerate(loads):
            if len(loads)>1: A(f"s_mov_b64 exec, {P(u)}")
            if u==0: A("s_waitcnt vmcnt(0)")
            A(f"v_xor_b32 v{tmp}, {tagreg}, v{regs[0]}")
            for r in regs[1:]: A(f"v_bitop3_b32 v{tmp}, v{r}, {tagreg}, v{tmp} bitop3:0xbe")
            if mask!=-1: A(f"v_and_b32 v{tmp}, {mask}, v{tmp}")
            A(f"v_cmp_ne_u32 {P(u)}, 0, v{tmp}")
        if len(loads)==1: A(f"s_and_b64 s[88:89], {P(0)}, s[90:91]")
        else:
            A(f"s_or_b64 s[88:89], {P(0)}, {P(1)}")
            for u in range(2,len(loads)): A(f"s_or_b64 s[88:89], s[88:89], {P(u)}")
            A("s_and_b64 s[88:89], s[88:89], s[90:91]")
        A(f"s_cbranch_scc1 {name}\ns_mov_b64 exec, -1")
    def fpoll(name, vaddr, srdr, off, r, cc='sc1'):
        A(f"s_movk_i32 s40, 2048\n{name}:\nbuffer_load_dword v{r}, v{vaddr}, {srdr}, 0 offen offset:{off} {cc}\ns_sub_u32 s40, s40, 1\ns_cbranch_scc1 {name}_x\ns_waitcnt vmcnt(0)\nv_cmp_ne_u32 vcc, s7, v{r}\ns_cbranch_vccnz {name}\n{name}_x:")
    def ctl(m, guard=True):
        if not fb: return
        srd(84,"s28","s29",256)
        if guard: A(f"s_cmp_lg_u32 s3, 3\ns_cbranch_scc1 L_nc{m}")
        A(f"""s_mov_b64 exec, 1
        v_mov_b32 v58, 1
        v_mov_b32 v59, 0
        buffer_atomic_add v58, off, s[84:87], 0 offset:16 sc0 sc1
        s_waitcnt vmcnt(0)
        v_readfirstlane_b32 s88, v58
        s_and_b32 s88, s88, 1023
        s_cmp_ge_u32 s88, {256*m+R1+RL[m]}
        s_cselect_b32 s89, 1, 0
        s_cmp_ge_u32 s88, {256*m+R2}
        s_cselect_b32 s89, 2, s89
        v_mov_b32 v58, s89
        ds_write_b32 v59, v58 offset:{L_RK}
        s_mov_b64 exec, -1
        L_nc{m}:""")
    def red8(op, regs):
        for m in ("row_half_mirror","quad_perm:[1,0,3,2]","quad_perm:[2,3,0,1]"):
            if len(regs)<3: A(f"s_nop {2-len(regs)}")
            for r in regs: A(f"v_{op}_f32_dpp v{r}, v{r}, v{r} {m} {DPP}")
    def swapred(op, regs, tmps):
        for sw in ("v_permlane16_swap_b32","v_permlane32_swap_b32"):
            for r,t in zip(regs,tmps): A(f"v_mov_b32 v{t}, v{r}")
            A("s_nop 1")
            for r,t in zip(regs,tmps): A(f"{sw} v{r}, v{t}")
            A("s_nop 1")
            for r,t in zip(regs,tmps): A(f"v_{op}_f32 v{r}, v{r}, v{t}")
    L.append(HDR.rstrip())
    L.append(f"; @launch grid=(256,1,1) block=(512,1,1) lds={L_TOT}")
    L.append(f'.amdgcn_target "amdgcn-amd-amdhsa--gfx950"\n.text\n.globl {KN}\n.p2align 8\n.type {KN},@function\n{KN}:')
    if diag:
        for k in range(8): A(f"s_mov_b64 s[{64+2*k}:{65+2*k}], 0")
    stamp(0)
    if pad and not diag: A("s_memrealtime s[64:65]")
    if late and diag: A(f"s_and_b32 s4, s2, 7\ns_cmp_lg_u32 s4, 4\ns_cbranch_scc1 L_nlate\nL_late:\ns_memrealtime s[92:93]\ns_waitcnt lgkmcnt(0)\ns_sub_u32 s92, s92, s64\ns_cmp_lt_u32 s92, {late}\ns_cbranch_scc1 L_late\nL_nlate:")
    A("""s_load_dwordx16 s[8:23], s[0:1], 0
    s_load_dwordx8 s[24:31], s[0:1], 64
    s_cmpk_ge_u32 s2, 256
    s_cbranch_scc1 L_end
    v_lshrrev_b32 v1, 6, v0
    v_and_b32 v0, 63, v0
    v_readfirstlane_b32 s3, v1
    v_and_b32 v2, 15, v0
    v_lshrrev_b32 v3, 4, v0
    s_cmp_lt_u32 s3, 4
    s_cbranch_scc1 L_helper""")
    A("""s_and_b32 s4, s2, 31
    s_lshl_b32 s4, s4, 23
    s_lshr_b32 s5, s2, 5
    s_lshl_b32 s5, s5, 18
    s_add_u32 s4, s4, s5
    s_lshl_b32 s5, s3, 11
    s_add_u32 s4, s4, s5
    s_add_u32 s4, s4, %d
    s_lshr_b32 s6, s2, 3
    s_lshl_b32 s6, s6, 13
    v_lshlrev_b32 v1, 4, v2
    v_lshl_add_u32 v1, v3, 9, v1
    s_mov_b32 s34, 0x40000
    s_mov_b32 s35, 0x20000
    s_mov_b32 s38, 0x40000
    s_mov_b32 s39, 0x20000
    s_waitcnt lgkmcnt(0)
    s_add_u32 s32, s10, s4
    s_addc_u32 s33, s11, 0
    s_add_u32 s36, s12, s4
    s_addc_u32 s37, s13, 0""" % (12288*512-4*2048))
    RB=256-8*NS
    thr=[False]
    if fb or sx: N=NP=NH; NV=0
    def sxv(): pass
    if sx:
        nib=[0xC,4,0,1,3]; dg=[int(c) for c in str(sx)[1:]]; assert len(dg)==8
        sxc=sum(nib[d]<<(4*i) for i,d in enumerate(dg)); lo=[any(nib[d]&(4<<p) for d in dg) for p in (0,1)]
        A(f"s_getreg_b32 s62, hwreg(20,0,3)\ns_lshl_b32 s62, s62, 2\ns_lshr_b32 s62, {hex(sxc)}, s62")
    def rd(z): A(f"v_mov_b32 v{z}, 0\nds_read_b32 v{z}, v{z} offset:{L_RK}")
    def ap(z): A(f"s_waitcnt lgkmcnt(0)\nv_readfirstlane_b32 s62, v{z}\ns_cmp_eq_u32 s62, 2\ns_cselect_b64 vcc, -1, 0")
    if fb: A("s_mov_b32 s62, 1\ns_mov_b64 vcc, 0")
    def issueh(h):
        n=h//2; sl=RB+8*(n%NS)+4*(h%2); sr="s[32:35]" if n<32 else "s[36:39]"
        if fb and thr[0]:
            A(f"s_cbranch_vccnz L_th{h}\ns_waitcnt vmcnt({NM-1})\ns_cmp_eq_u32 s62, 0\ns_cbranch_scc0 L_th{h}\ns_waitcnt vmcnt({NL-1})\nL_th{h}:")
        if sx and h>=NM-1:
            A(f"s_bitcmp1_b32 s62, {h%2}\ns_cbranch_scc1 L_th{h}\ns_waitcnt vmcnt({NM-1})")
            if lo[h%2]: A(f"s_bitcmp1_b32 s62, {2+h%2}\ns_cbranch_scc0 L_th{h}\ns_waitcnt vmcnt({NM-2})")
            A(f"L_th{h}:")
        A(f"buffer_load_dwordx4 v[{sl}:{sl+3}], v1, {sr}, s6 offen offset:{256*(h%2)} nt")
        if h%2: A("s_add_u32 s6, s6, 0x2000\ns_and_b32 s6, s6, 0x3ffff")
    for h in range(2*NS):
        n=h//2
        if h==0: stamp(4,True)
        if h%2==0 and (n==B0 or n==PB): A("s_barrier")
        if h==0: stamp(5,True)
        if h==NP+1: stamp(6,True)
        if NP:
            if h>=NP: A(f"s_waitcnt vmcnt({NP-1})")
        elif INFL and n>=INFL and h%2==0: A(f"s_waitcnt vmcnt({2*INFL-2})")
        thr[0]=h>=NL
        if fb and h%8==0 and h>=8: rd(62)
        if fb and h%8==1 and h>=8: ap(62)
        issueh(h)
        if h==3:
            A("s_load_dword s7, s[30:31], 0")
            A(f"v_lshrrev_b32 v4, 3, v2\nv_lshlrev_b32 v4, 9, v4\nv_lshl_add_u32 v4, v2, 4, v4\nv_xor_b32 v5, 0x200, v4")
    stamp(1)
    A("s_waitcnt lgkmcnt(0)\ns_barrier")
    A(f"ds_read_b128 v[8:11], v4 offset:{L_Q}\nds_read_b128 v[12:15], v4 offset:{L_Q+256}\nds_read_b128 v[16:19], v5 offset:{L_Q}\nds_read_b128 v[20:23], v5 offset:{L_Q+256}")
    A("s_add_u32 s7, s7, 1\ns_waitcnt lgkmcnt(0)")
    stamp(2)
    SC=24
    def fin(n):
        u,w=(4,5) if n%2==0 else (6,7); s=SC+n
        return [f"v_add_f32_dpp v{s}, v{w}, v{u} row_ror:8 {DPP}",
                f"v_add_f32_dpp v{s}, v{s}, v{s} row_half_mirror {DPP}",
                f"v_add_f32_dpp v{s}, v{s}, v{s} quad_perm:[1,0,3,2] {DPP}",
                f"v_add_f32_dpp v{s}, v{s}, v{s} quad_perm:[2,3,0,1] {DPP}",
                f"v_cvt_pk_bf16_f32 v{s}, v{s}, v{s}",
                f"v_and_b32 v{s}, 0xffff0000, v{s}"]
    def issuedh(h):
        if N: return min(128, max(h+(min(NV,N+h-64) if NV and h>=64 else N), 2*NS+h//CR))
        n=h//2; return 2*min(64, max(n+D, NS+n//CR))
    def waith(h):
        if N: A(f"s_waitcnt vmcnt({issuedh(h)-h-1})")
        elif h%2==0: A(f"s_waitcnt vmcnt({issuedh(h)-h-2})")
    def after(h):
        for m in range(issuedh(h), issuedh(h+1)): issueh(m)
    for n in range(32):
        sl=RB+8*(n%NS); u,w=(4,5) if n%2==0 else (6,7)
        A(f"v_mov_b32 v{u}, 0\nv_mov_b32 v{w}, 0")
        pend=fin(n-1) if n else []
        if fb and n in (8,16,22,27): rd(62)
        if fb and n-1 in (8,16,22,27): ap(62)
        for d in range(8):
            if d%4==0: waith(2*n+d//4)
            A(f"v_dot2c_f32_bf16 v{u}, v{sl+d}, v{8+d}\nv_dot2c_f32_bf16 v{w}, v{sl+d}, v{16+d}")
            if pend and d>=1: A(pend.pop(0))
            if d%4==3: after(2*n+d//4)
    A("s_nop 2")
    for x in fin(31): A(x+"\ns_nop 1")
    stamp(3)
    A(f"v_max3_f32 v4, v{SC}, v{SC+1}, v{SC+2}\nv_max3_f32 v5, v{SC+3}, v{SC+4}, v{SC+5}")
    for k in range(6,30,4): A(f"v_max3_f32 v4, v4, v{SC+k}, v{SC+k+1}\nv_max3_f32 v5, v5, v{SC+k+2}, v{SC+k+3}")
    A(f"v_max3_f32 v4, v4, v{SC+30}, v{SC+31}\nv_max_f32 v4, v4, v5")
    swapred("max",[4],[5])
    A(f"v_lshrrev_b32 v6, 3, v2\nv_lshlrev_b32 v6, 4, v6\ns_lshl_b32 s4, s3, 2\nv_add_u32 v7, s4, v6")
    A(f"ds_write_b32 v7, v4 offset:{L_MX-16}\ns_waitcnt lgkmcnt(0)\ns_barrier")
    A(f"ds_read_b128 v[8:11], v6 offset:{L_MX}")
    if fb: rd(22)
    masks(16,2,5)
    for k in range(8): A(f"v_mov_b32 v{56+k}, 0")
    A(f"s_mov_b32 s4, {CEXP}\ns_waitcnt lgkmcnt(0)\nv_max3_f32 v4, v8, v9, v10\nv_max_f32 v4, v4, v11")
    for k in range(32): A(f"v_sub_f32 v{SC+k}, v{SC+k}, v4")
    for k in range(32): A(f"v_mul_f32 v{SC+k}, s4, v{SC+k}")
    for k in range(32): A(f"v_exp_f32 v{SC+k}, v{SC+k}")
    A(f"v_add_f32 v4, v{SC}, v{SC+1}\nv_add_f32 v5, v{SC+2}, v{SC+3}")
    for k in range(4,32,2): A(f"v_add_f32 v4, v4, v{SC+k}\nv_add_f32 v5, v5, v{SC+k+1}")
    A("v_add_f32 v4, v4, v5")
    swapred("add",[4],[5])
    A(f"ds_write_b32 v7, v4 offset:{L_LS-16}")
    for k in range(32): A(f"v_cvt_pk_bf16_f32 v{SC+k}, v{SC+k}, v{SC+k}")
    A("s_waitcnt lgkmcnt(0)\ns_barrier")
    def mkA(n):
        a=8+4*(n%2)
        for k in range(4): A(f"v_and_b32 v{a+k}, v{SC+n}, v{16+k}")
    if fb:
        ap(22)
    if sx: sxv()
    mkA(0)
    A(f"v_lshrrev_b32 v4, 1, v3\nv_lshlrev_b32 v4, 10, v4\nv_and_b32 v5, 1, v3\nv_lshl_add_u32 v4, v5, 4, v4\nv_lshl_add_u32 v4, v2, 5, v4\ns_lshl_b32 s4, s3, 11\nv_add_u32 v4, s4, v4")
    for n in range(32,64):
        sl=RB+8*(n%NS); a=8+4*(n%2)
        if n==SB: A("s_barrier")
        if fb and n in (35,38,41,44): rd(22)
        if fb and n-1 in (35,38,41,44): ap(22)
        if n==HB and hb: A('s_barrier')
        if n==HB and not hb:
            srd(44,"s28","s29",256); srd(48,"s30","s31",WSN)
            A("s_and_b32 s4, s2, 7\ns_lshl_b32 s5, s4, 5\ns_lshl_b32 s4, s4, 2\ns_cmp_lg_u32 s3, 4\ns_cbranch_scc1 L_na\ns_mov_b64 exec, 1\nv_mov_b32 v6, 1\nv_mov_b32 v7, s7\nbuffer_atomic_add v6, off, s[44:47], s5 sc0 sc1\ns_mov_b64 exec, -1\nL_na:")
        if n<63: mkA(n-32+1)
        waith(2*n)
        A(f"v_mfma_f32_16x16x32_bf16 v[56:59], v[{a}:{a+3}], v[{sl}:{sl+3}], v[56:59]")
        after(2*n); waith(2*n+1)
        A(f"v_mfma_f32_16x16x32_bf16 v[60:63], v[{a}:{a+3}], v[{sl+4}:{sl+7}], v[60:63]")
        if n==HC and HB<64 and not hb:
            assert HC==63 or 2*HC+1>=issuedh(2*HB)
            A(f"v_readfirstlane_b32 s5, v6\ns_cmp_lg_u32 s3, 4\ns_cbranch_scc1 L_nb\ns_and_b32 s5, s5, 31\ns_cmp_lg_u32 s5, 31\ns_cbranch_scc1 L_nb\ns_mov_b64 exec, 1\nbuffer_store_dword v7, off, s[48:51], s4 offset:{GO} sc1\ns_mov_b64 exec, -1\nL_nb:")
        after(2*n+1)
    stamp(4)
    A(f"s_nop 6\nds_write_b128 v4, v[56:59] offset:{L_PART-8192}\nds_write_b128 v4, v[60:63] offset:{L_PART-8192+512}\ns_waitcnt lgkmcnt(0)\ns_barrier")
    if abl: A("s_branch L_fin")
    A("""s_cmp_lg_u32 s3, 4
    s_cbranch_scc1 L_fin
    s_cmpk_ge_u32 s2, 128
    s_cbranch_scc1 L_fin
    s_and_b32 s4, s2, 0x62
    s_cmp_eq_u32 s4, 0x62
    s_cbranch_scc1 L_fin""")
    srd(32,"s30","s31",WSN)
    if pm2: A(f"s_lshr_b32 s4, s2, 5\ns_lshl_b32 s4, s4, 17\ns_and_b32 s5, s2, 31\ns_lshl_b32 s5, s5, 6\ns_add_u32 s4, s4, s5\nv_lshrrev_b32 v1, 2, v0\nv_and_b32 v4, 3, v0\nv_lshlrev_b32 v4, 4, v4\nv_lshl_add_u32 v1, v1, 11, v4")
    else: A("s_lshl_b32 s4, s2, 12\nv_lshlrev_b32 v1, 4, v0")
    for u in range(4): A(f"s_add_u32 s{48+u}, s4, {P2+u*(32768 if pm2 else 1024)}")
    A(f"""
    s_and_b32 s41, s7, {TAGM}""")
    A("""s_bfe_u32 s42, s2, 0x20003
    s_mul_i32 s42, s42, 896
    s_lshr_b32 s43, s2, 5
    s_lshl_b32 s43, s43, 8
    s_add_u32 s42, s42, s43
    s_and_b32 s43, s2, 3
    s_lshl_b32 s43, s43, 6
    s_add_u32 s42, s42, s43
    s_and_b32 s43, s2, 4
    s_lshl_b32 s43, s43, 1
    s_add_u32 s42, s42, s43
    v_and_b32 v4, 3, v0
    v_lshlrev_b32 v4, 4, v4""")
    srd(36,"s8","s9",3584); srd(44,"s26","s27",3584)
    A("buffer_load_dwordx2 v[6:7], v4, s[36:39], s42 offen")
    A(f"s_mov_b32 s43, {~TAGM&0xffffffff}\nv_and_b32 v5, 7, v0\nv_lshlrev_b32 v5, 2, v5\ns_lshr_b32 s5, s2, 3\ns_and_b32 s5, s5, {g2r-1}\ns_lshl_b32 s5, s5, 7\nv_add_u32 v5, s5, v5\ns_setprio 3\ns_barrier")
    if go2: fpoll("L_g2",5,"s[32:35]",GO if go2==3 else GO2,8)
    stamp(6)
    mpoll("L_p2",[(f"buffer_load_dwordx4 v[{8+4*u}:{11+4*u}], v1, s[32:35], s{48+u} offen sc1",list(range(8+4*u,12+4*u))) for u in range(4)],"s41",TAGM,5,sl2)
    stamp(5)
    for r in range(8,24): A(f"v_and_b32 v{r}, s43, v{r}")
    A("v_pk_add_f32 v[8:9], v[8:9], v[12:13]\nv_pk_add_f32 v[10:11], v[10:11], v[14:15]\nv_pk_add_f32 v[16:17], v[16:17], v[20:21]\nv_pk_add_f32 v[18:19], v[18:19], v[22:23]\nv_pk_add_f32 v[8:9], v[8:9], v[16:17]\nv_pk_add_f32 v[10:11], v[10:11], v[18:19]")
    A("""v_lshlrev_b32 v24, 16, v6
    v_and_b32 v25, 0xffff0000, v6
    v_lshlrev_b32 v26, 16, v7
    v_and_b32 v27, 0xffff0000, v7""")
    for m in ("row_ror:4","row_ror:8"):
        for r in range(8,12): A(f"v_add_f32_dpp v{r}, v{r}, v{r} {m} {DPP}")
    swapred("add",[8,9,10,11],[12,13,14,15])
    A("""v_pk_add_f32 v[8:9], v[8:9], v[24:25]
    v_pk_add_f32 v[10:11], v[10:11], v[26:27]
    v_cvt_pk_bf16_f32 v8, v8, v9
    v_cvt_pk_bf16_f32 v9, v10, v11
    s_mov_b64 exec, 15
    buffer_store_dwordx2 v[8:9], v4, s[44:47], s42 offen OSC
    s_cmp_lg_u32 s2, 0
    s_cbranch_scc1 L_fin
    s_mov_b64 exec, 1
    v_mov_b32 v5, s7
    buffer_store_dword v5, v4, s[32:35], 0 offen OSC""".replace("OSC",osc))
    if pad: A(f"L_pad:\ns_memrealtime s[92:93]\ns_waitcnt lgkmcnt(0)\ns_sub_u32 s92, s92, s64\ns_cmp_lt_u32 s92, {pad}\ns_cbranch_scc1 L_pad")
    A("L_fin:")
    stamp(7); dump()
    A("L_end:\ns_endpgm")
    A("L_helper:\ns_setprio 3")
    if abl==1: A("s_waitcnt lgkmcnt(0)\ns_branch L_fin")
    A("""s_and_b32 s4, s2, 7
    s_lshr_b32 s5, s2, 3""")
    A("s_cmp_lg_u32 s3, 0\ns_cbranch_scc1 L_h123n")
    A(f"""v_mul_u32_u24 v4, 896, v3
    v_lshl_add_u32 v4, v2, 3, v4
    v_lshrrev_b32 v5, 3, v0
    v_and_b32 v6, 7, v0
    v_and_b32 v7, 2, v5
    v_xor_b32 v6, v6, v7
    v_lshlrev_b32 v6, 4, v6
    s_mov_b32 m0, 0
    s_mov_b32 s39, 0x20000
    s_cmpk_ge_u32 s2, 240
    s_cbranch_scc1 L_h123n
    s_cmpk_ge_u32 s2, 128
    s_cbranch_scc1 L_tf
    s_movk_i32 s50, 8192
    s_lshr_b32 s54, s5, 3
    {"s_and_b32 s51, s5, 7" if lat!=2 else "s_mov_b32 s51, s4"}
    {("s_mov_b32 s55, s4","s_add_u32 s55, s4, s5","s_mov_b32 s55, s5","s_lshl2_add_u32 s55, s54, s5")[lat]}
    {"s_add_u32 s55, s55, s4" if lat==3 else ""}
    s_and_b32 s55, s55, 7
    s_lshl_b32 s52, s55, 3
    s_add_u32 s52, s52, s51
    s_lshl_b32 s52, s52, 7
    s_lshl_b32 s53, s55, 12
    s_lshl_b32 s51, s51, 8
    s_add_u32 s53, s53, s51
    s_lshl_b32 s51, s54, 11
    s_add_u32 s53, s53, s51
    s_add_u32 s53, s53, {QG}
    v_and_b32 v8, 3, v2
    v_lshlrev_b32 v8, 15, v8
    v_lshrrev_b32 v9, 2, v2
    v_lshl_add_u32 v8, v9, 6, v8
    v_lshl_add_u32 v60, v3, 4, v8
    s_waitcnt lgkmcnt(0)
    s_mov_b64 s[36:37], s[14:15]
    s_branch L_tg
    L_tf:
    s_movk_i32 s50, 3584
    s_bfe_u32 s54, s2, 0x10001
    s_bfe_u32 s51, s2, 0x50002
    s_lshl_b32 s52, s51, 7
    s_lshl_b32 s53, s51, 12
    s_and_b32 s51, s2, 1
    s_lshl_b32 s51, s51, 8
    s_add_u32 s53, s53, s51
    s_lshl_b32 s51, s54, 7
    s_add_u32 s53, s53, s51
    s_add_u32 s53, s53, {HG}
    v_and_b32 v8, 3, v2
    v_lshlrev_b32 v8, 5, v8
    v_lshrrev_b32 v9, 2, v2
    v_lshl_add_u32 v8, v9, 10, v8
    v_lshrrev_b32 v9, 1, v3
    v_lshl_add_u32 v8, v9, 9, v8
    v_and_b32 v9, 1, v3
    v_lshl_add_u32 v60, v9, 4, v8
    s_bitcmp1_b32 s2, 0
    s_waitcnt lgkmcnt(0)
    s_cselect_b64 s[36:37], s[22:23], s[20:21]
    L_tg:
    s_mul_i32 s38, s50, 448
    s_mul_i32 s51, s50, 224
    s_mul_i32 s51, s51, s54
    s_add_u32 s52, s52, s51
    {"s_and_b32 s52, s2, 127" if xb else ""}
    {"s_lshr_b32 s51, s2, 7" if xb else ""}
    {"s_lshr_b32 s52, s52, s51" if xb else ""}
    {"s_mul_i32 s52, s52, 28672" if xb else ""}
    {"s_movk_i32 s50, 128" if xb else ""}
    {"s_mov_b32 s38, 0" if xb==2 else ""}
    v_mul_u32_u24 v5, s50, v5
    s_lshl_b32 s50, s50, 3
    v_add_u32 v5, v5, v6
    v_xor_b32 v6, 64, v5""")
    stamp(4,True)
    srd(32,"s8","s9",3584)
    for u in range(7): A(f"buffer_load_dwordx2 v[{64+2*u}:{65+2*u}], v4, s[32:35], 0 offen offset:{128*u}")
    for t in range(28):
        A(f"buffer_load_dwordx4 v{5+t%2}, s[36:39], s52 offen {wnt} lds")
        if t<27: A("s_add_u32 m0, m0, 1024\ns_add_u32 s52, s52, s50")
    if B0>=0: A("s_barrier")
    A("s_load_dword s7, s[30:31], 0")
    srd(56,"s30","s31",WSN)
    A("s_waitcnt vmcnt(28)")
    stamp(1)
    X=80
    for u in range(14): A(f"v_lshlrev_b32 v{X+2*u}, 16, v{64+u}\nv_and_b32 v{X+2*u+1}, 0xffff0000, v{64+u}")
    A(f"v_pk_add_f32 v[8:9], v[{X}:{X+1}], v[{X+2}:{X+3}]")
    for u in range(2,14): A(f"v_pk_add_f32 v[8:9], v[8:9], v[{X+2*u}:{X+2*u+1}]")
    A("v_add_f32 v8, v8, v9")
    def rowred(r):
        for m in (8,4,2,1): A(f"s_nop 1\nv_add_f32_dpp v{r}, v{r}, v{r} row_ror:{m} {DPP}")
    rowred(8)
    A("v_mul_f32 v8, 0x3b124925, v8\nv_mov_b32 v10, 0\nv_mov_b32 v11, 0")
    for u in range(14):
        A(f"v_sub_f32 v12, v{X+2*u}, v8\nv_sub_f32 v13, v{X+2*u+1}, v8\nv_fmac_f32 v10, v12, v12\nv_fmac_f32 v11, v13, v13")
    A("v_add_f32 v10, v10, v11")
    rowred(10)
    A("""v_mul_f32 v10, 0x3b124925, v10
    v_cvt_pk_bf16_f32 v8, v8, v10
    v_and_b32 v10, 0xffff0000, v8
    v_lshlrev_b32 v8, 16, v8
    v_add_f32 v10, 0x3727c5ac, v10
    v_cvt_pk_bf16_f32 v10, v10, v10
    v_and_b32 v10, 0xffff0000, v10
    v_sqrt_f32 v10, v10
    s_nop 0
    v_cvt_pk_bf16_f32 v10, v10, v10
    v_and_b32 v10, 0xffff0000, v10
    v_rcp_f32 v10, v10
    s_mul_i32 s55, s54, 448""")
    for u in range(14):
        a,b=X+2*u,X+2*u+1
        A(f"v_sub_f32 v{a}, v{a}, v8\nv_sub_f32 v{b}, v{b}, v8\nv_cvt_pk_bf16_f32 v{a}, v{a}, v{b}\nv_and_b32 v{b}, 0xffff0000, v{a}\nv_lshlrev_b32 v{a}, 16, v{a}\nv_mul_f32 v{a}, v{a}, v10\nv_mul_f32 v{b}, v{b}, v10\nv_cvt_pk_bf16_f32 v{64+u}, v{a}, v{b}")
    for u in range(7): A(f"ds_write_b64 v4, v[{64+2*u}:{65+2*u}] offset:{L_XN+128*u}")
    A("""v_and_b32 v5, 3, v2
    v_lshlrev_b32 v6, 3, v5
    v_mul_u32_u24 v5, 896, v5
    v_lshl_add_u32 v5, v3, 4, v5
    v_add_u32 v5, s55, v5
    v_lshrrev_b32 v7, 2, v2
    v_lshl_add_u32 v6, v7, 7, v6
    v_lshl_add_u32 v6, v3, 10, v6
    v_lshrrev_b32 v7, 3, v2
    v_lshl_add_u32 v6, v7, 5, v6
    v_and_b32 v7, 1, v3
    v_lshl_add_u32 v56, v7, 6, v6
    v_xor_b32 v57, 32, v56
    v_xor_b32 v58, 64, v56
    v_xor_b32 v59, 96, v56
    s_waitcnt lgkmcnt(0)""")
    for t in range(7): A(f"ds_read_b128 v[{64+4*t}:{67+4*t}], v5 offset:{L_XN+64*t}")
    A(f"""s_add_u32 s7, s7, 1
    s_and_b32 s41, s7, {TAGQ}
    s_mov_b32 s43, {~TAGQ&0xffffffff}
    v_lshrrev_b32 v7, 2, v2
    v_cmp_eq_u32 vcc, 1, v7
    v_cmp_eq_u32 s[44:45], 2, v7
    v_cmp_eq_u32 s[46:47], 3, v7
    v_mov_b32 v7, s41""")
    def trr(t):
        A(f"s_waitcnt vmcnt({24-4*t})")
        if t==6: stamp(2)
        for c in range(4):
            r=96+16*t+4*c
            A(f"ds_read_b64_tr_b16 v[{r}:{r+1}], v{56+c} offset:{4096*t}\nds_read_b64_tr_b16 v[{r+2}:{r+3}], v{56+c} offset:{4096*t+512}")
    trr(0)
    for t in range(7):
        if t<6: trr(t+1)
        A(f"s_waitcnt lgkmcnt({8 if t<6 and not (diag and t==5) else 0})")
        for c in range(4):
            r=96+16*t+4*c
            A(f"v_mfma_f32_16x16x32_bf16 v[{8+4*c}:{11+4*c}], v[{r}:{r+3}], v[{64+4*t}:{67+4*t}], "+("0" if t==0 else f"v[{8+4*c}:{11+4*c}]"))
    A("s_nop 6")
    for c,m in ((1,"vcc"),(2,"s[44:45]"),(3,"s[46:47]")):
        if c==3: A("s_nop 0")
        for k in range(4): A(f"v_cndmask_b32 v{8+k}, v{8+k}, v{8+4*c+k}, {m}")
    for k in range(4): A(f"v_add_u32 v{8+k}, {(TAGQ+1)//2}, v{8+k}")
    for k in range(4): A(f"v_and_or_b32 v{8+k}, v{8+k}, s43, v7")
    if not xa&1: A("buffer_store_dwordx4 v[8:11], v60, s[56:59], s53 offen sc1")
    stamp(3)
    A("s_barrier\ns_branch L_hb1")
    if not reord:
        A("L_h123n:")
        if B0>=0: A("s_barrier")
    A("L_h123:\ns_waitcnt lgkmcnt(0)\ns_load_dword s7, s[30:31], 0")
    srd(56,"s30","s31",WSN)
    A(f"""s_and_b32 s51, s2, 31
    s_lshl_b32 s51, s51, 12
    s_add_u32 s51, s51, {QG}
    v_lshlrev_b32 v5, 4, v0
    v_lshlrev_b32 v6, 3, v0
    s_mov_b32 s43, {~TAGQ&0xffffffff}
    s_waitcnt lgkmcnt(0)
    s_add_u32 s7, s7, 1
    s_and_b32 s41, s7, {TAGQ}""")
    ctl(0)
    A("s_barrier")
    ctl(1)
    A("s_cmp_lg_u32 s3, 2\ns_cbranch_scc1 L_hb1")
    if xa: A("s_branch L_hb1")
    mpoll("L_pq",[(f"buffer_load_dwordx4 v[{8+4*u}:{11+4*u}], v5, s[56:59], s51 offen offset:{1024*u} sc1",list(range(8+4*u,12+4*u))) for u in range(4)],"s41",TAGQ,7)
    stamp(3)
    for r in range(8,24): A(f"v_and_b32 v{r}, s43, v{r}")
    for r in range(8,16,2): A(f"v_pk_add_f32 v[{r}:{r+1}], v[{r}:{r+1}], v[{r+8}:{r+9}]")
    A(f"""v_cvt_pk_bf16_f32 v8, v8, v9
    v_cvt_pk_bf16_f32 v9, v10, v11
    v_cvt_pk_bf16_f32 v10, v12, v13
    v_cvt_pk_bf16_f32 v11, v14, v15
    ds_write_b64 v6, v[8:9] offset:{L_Q}
    ds_write_b64 v6, v[10:11] offset:{L_Q+512}
    s_waitcnt lgkmcnt(0)
    L_hb1:
    s_barrier
    s_setprio 0""")
    if abl==2: A("s_branch L_fin")
    ctl(2)
    A("""s_and_b32 s49, s5, 3
    s_andn2_b32 s5, s5, 3
    s_add_u32 s5, s5, s3
    s_lshl_b32 s6, s4, 5
    s_add_u32 s6, s6, s5
    s_mul_i32 s48, s4, 28
    s_min_u32 s51, s5, 27
    s_add_u32 s48, s48, s51""")
    A("""s_mul_i32 s51, s6, 14336
    s_add_u32 s36, s16, s51
    s_addc_u32 s37, s17, 0
    s_sub_u32 s38, %d, s51
    s_mov_b32 s39, 0x20000
    s_mul_i32 s51, s48, 7168
    s_add_u32 s44, s24, s51
    s_addc_u32 s45, s25, 0
    s_sub_u32 s46, %d, s51
    s_cmp_lt_u32 s5, 28
    s_cselect_b32 s46, s46, 0
    s_mov_b32 s47, 0x20000
    s_lshl_b32 s51, s49, 8
    v_lshl_add_u32 v5, v2, 4, s51
    v_mul_u32_u24 v6, 1792, v3
    v_add_u32 v7, v5, v6
    v_add_u32 v5, v7, v6""" % (4096*896, 1792*896))
    for k in range(24): A(f"v_mov_b32 v{24+k}, 0")
    A("s_cmp_eq_u32 s49, 3\ns_cselect_b32 s50, 0x00ff00ff, -1\ns_mov_b32 exec_lo, s50\ns_mov_b32 exec_hi, s50")
    for k in range(4): A(f"buffer_load_dwordx4 v[{24+4*k}:{27+4*k}], v5, s[36:39], 0 offen offset:{896*k} nt")
    for k in range(2): A(f"buffer_load_dwordx4 v[{40+4*k}:{43+4*k}], v7, s[44:47], 0 offen offset:{896*k} nt")
    A("s_mov_b64 exec, -1")
    masks(16,2,5)
    A(f"""v_and_b32 v5, 31, v0
    v_lshlrev_b32 v5, 4, v5
    s_lshl_b32 s51, s48, 9
    s_add_u32 s51, s51, {HG}""")
    mpoll("L_ph",[("buffer_load_dwordx4 v[8:11], v5, s[56:59], s51 offen sc1",[8,9,10,11])],"s41",TAGQ,7,8)
    for r in range(8,12): A(f"v_and_b32 v{r}, s43, v{r}")
    A("v_and_b32 v5, 1, v0\nv_lshlrev_b32 v5, 4, v5\nv_and_b32 v6, 6, v0\nv_lshl_add_u32 v5, v6, 5, v5\ns_lshl_b32 s51, s3, 8\nv_add_u32 v5, s51, v5")
    for r in range(8,12): A(f"v_add_f32_dpp v{r}, v{r}, v{r} row_ror:8 {DPP}")
    for r in range(8,12): A(f"v_cvt_pk_bf16_f32 v{r}, v{r}, v{r}")
    for r in range(8,12): A(f"v_and_b32 v{r}, 0xffff0000, v{r}")
    for r in range(8,12): A(f"v_mov_b32 v{r+4}, v{r}")
    A("s_nop 1")
    for r in range(8,12): A(f"v_permlane16_swap_b32 v{r}, v{r+4}")
    A("s_nop 1")
    for r in range(8,12): A(f"v_mul_f32 v{r+56}, 0xbfb8aa3b, v{r}")
    for r in range(8,12): A(f"v_exp_f32 v{r+56}, v{r+56}")
    for r in range(8,12): A(f"v_add_f32 v{r+56}, 1.0, v{r+56}")
    for r in range(8,12): A(f"v_rcp_f32 v{r+56}, v{r+56}")
    for r in range(8,12): A(f"v_mul_f32 v{r}, v{r+56}, v{r}")
    for r in range(8,12): A(f"v_cvt_pk_bf16_f32 v{r}, v{r}, v{r}")
    for r in range(8,12): A(f"v_and_b32 v{r}, 0xffff0000, v{r}")
    for r in range(8,12): A(f"v_mul_f32 v{r}, v{r}, v{r+4}")
    for r in range(8,12): A(f"v_cvt_pk_bf16_f32 v{r}, v{r}, v{r}")
    A(f"ds_write_b128 v5, v[8:11] offset:{L_H}\ns_waitcnt lgkmcnt(0)")
    A(f"""v_lshrrev_b32 v4, 3, v2
    v_lshlrev_b32 v5, 6, v4
    v_lshl_add_u32 v5, v3, 3, v5
    v_add_u32 v5, s51, v5
    ds_read_b64 v[8:9], v5 offset:{L_H}
    ds_read_b64 v[10:11], v5 offset:{L_H+128}
    s_and_b32 s41, s7, {TAGM}
    s_mov_b32 s43, {~TAGM&0xffffffff}
    s_waitcnt lgkmcnt(0) vmcnt(0)""")
    for q in range(4):
        for k in range(4): A(f"v_and_b32 v{64+4*q+k}, v{8+q}, v{16+k}")
    A("""s_nop 1
    v_mfma_f32_16x16x32_bf16 v[48:51], v[64:67], v[40:43], 0
    v_mfma_f32_16x16x32_bf16 v[52:55], v[72:75], v[40:43], 0
    v_mfma_f32_16x16x32_bf16 v[48:51], v[68:71], v[44:47], v[48:51]
    v_mfma_f32_16x16x32_bf16 v[52:55], v[76:79], v[44:47], v[52:55]""")
    A(f"""v_and_b32 v5, 7, v2
    v_lshl_add_u32 v4, v4, 6, v5
    s_lshl_b32 s51, s4, 4
    s_lshr_b32 s52, s5, 4
    s_add_u32 s51, s51, s52
    v_lshl_add_u32 v4, v4, 1, s51
    v_lshlrev_b32 v5, 4, v4
    v_lshlrev_b32 v6, {11 if pm else 6}, v2
    v_lshl_add_u32 v6, v3, 4, v6
    s_lshl_b32 s52, s4, 16
    s_lshl_b32 s53, s5, {6 if pm else 11}
    s_add_u32 s52, s52, s53
    s_add_u32 s52, s52, {P1}
    s_add_u32 s62, s52, {32768 if pm else 1024}
    s_and_b32 s54, s2, 31
    s_lshl_b32 s54, s54, 3
    s_lshr_b32 s55, s2, 5
    s_add_u32 s54, s54, s55
    s_lshr_b32 s94, s2, 3
    s_xor_b32 s95, s3, 3
    s_or_b32 s94, s94, s95
    s_lshl_b32 s95, s4, 2
    s_mov_b32 s42, {ST}""")
    A(f"""v_lshrrev_b32 v22, 2, v0
    v_and_b32 v8, 3, v0
    v_lshlrev_b32 v8, 4, v8
    v_lshl_add_u32 v61, v22, {6 if pm2 else 12}, v8
    v_lshl_add_u32 v22, v22, {6 if pm else 11}, v8
    s_lshl_b32 s48, s49, 17
    s_lshl_b32 s51, s3, {10 if pm2 else 16}
    s_add_u32 s48, s48, s51
    s_lshr_b32 s51, s6, 2
    s_lshl_b32 s51, s51, {11 if pm2 else 6}
    s_add_u32 s48, s48, s51
    s_add_u32 s48, s48, {P2}
    s_lshl_b32 s63, s4, 16
    s_lshl_b32 s51, s3, {10 if pm else 15}
    s_add_u32 s63, s63, s51
    s_and_b32 s51, s2, 24
    s_lshr_b32 s53, s2, 5
    s_add_u32 s51, s51, s53
    s_lshl_b32 s51, s51, {11 if pm else 6}
    s_add_u32 s63, s63, s51
    s_add_u32 s63, s63, {P1}
    s_lshl_b32 s51, s3, 10
    v_lshl_add_u32 v23, v0, 4, s51
    v_add_u32 v62, s51, v23""")
    if prew:
        A("s_cmp_gt_u32 s3, 1\ns_cbranch_scc1 L_npw\nv_not_b32 v8, s41\nv_not_b32 v9, s41\nv_not_b32 v10, s41\nv_not_b32 v11, s41")
        if prew&1: A("buffer_store_dwordx4 v[8:11], v22, s[56:59], s63 offen sc1")
        if prew&2: A("buffer_store_dwordx4 v[8:11], v61, s[56:59], s48 offen sc1")
        A("s_waitcnt vmcnt(0)\nL_npw:")
    if pre&1: A("buffer_load_dwordx4 v[8:11], v6, s[56:59], s52 offen sc1\nbuffer_load_dwordx4 v[12:15], v6, s[56:59], s62 offen sc1")
    if pre&2: A(f"s_and_b32 s55, s2, 127\ns_lshl_b32 s55, s55, 2\ns_add_u32 s55, s55, s3\ns_lshl_b32 s55, s55, 10\ns_add_u32 s55, s55, {P2}\nv_lshlrev_b32 v7, 4, v0\nbuffer_load_dwordx4 v[8:11], v7, s[56:59], s55 offen sc1")
    if pre: A("s_waitcnt vmcnt(0)")
    A(f"""s_barrier
    s_barrier
    s_cmp_lg_u32 s3, 3
    s_cbranch_scc1 L_st
    v_lshlrev_b32 v7, 4, v0
    s_mov_b64 exec, 3
    ds_read_b128 v[8:11], v7 offset:{L_MX}
    ds_read_b128 v[12:15], v7 offset:{L_LS}
    s_lshl_b32 s55, s54, 5
    s_add_u32 s55, s55, {ST}
    s_waitcnt lgkmcnt(0)
    v_max3_f32 v8, v8, v9, v10
    v_add_f32 v12, v12, v13
    v_add_f32 v14, v14, v15
    v_max_f32 v8, v8, v11
    v_add_f32 v9, v12, v14
    v_mov_b32 v10, s7
    v_mov_b32 v11, s7
    buffer_store_dwordx4 v[8:11], v7, s[56:59], s55 offen sc1
    s_mov_b64 exec, -1""")
    ctl(3,False)
    A("L_st:")
    if abl==3: A("s_branch L_fin")
    A(f"s_mov_b32 s55, {ST+4096}")
    A("s_barrier")
    mpoll("L_ps",[("buffer_load_dwordx4 v[8:11], v5, s[56:59], s42 offen sc1",[10,11]),("buffer_load_dwordx4 v[12:15], v5, s[56:59], s55 offen sc1",[14,15])],"s7",-1,7,8)
    stamp(4)
    A("v_mov_b32 v10, v12\nv_mov_b32 v11, v13")
    A("v_mov_b32 v12, v8\nv_mov_b32 v13, v10\ns_nop 0")
    red8("max",[12,13])
    A(f"""s_mov_b32 s55, {CEXP}
    v_sub_f32 v8, v8, v12
    v_sub_f32 v10, v10, v13
    v_mul_f32 v8, s55, v8
    v_mul_f32 v10, s55, v10
    v_exp_f32 v8, v8
    v_exp_f32 v10, v10
    s_nop 0
    v_mul_f32 v9, v9, v8
    v_mul_f32 v11, v11, v10
    s_nop 0""")
    red8("add",[9,11])
    A("""v_rcp_f32 v9, v9
    v_rcp_f32 v11, v11
    s_nop 0
    v_mul_f32 v20, v8, v9
    v_mul_f32 v21, v10, v11""")
    if hb:
        srd(84,"s28","s29",256)
        A(f"""s_lshl_b32 s88, s4, 5
        s_lshl_b32 s89, s4, {12 if gr else 2}
        s_add_u32 s89, s89, {0x1000-GO if gr else 0}
        v_mbcnt_lo_u32_b32 v57, -1, 0
        v_lshlrev_b32 v57, 7, v57
        v_mov_b32 v58, 1
        v_mov_b32 v59, s7
        s_setprio 3
        s_barrier
        s_cmp_lg_u32 s3, 3
        s_cbranch_scc1 L_nb
        s_mov_b64 exec, 1
        buffer_atomic_add v58, off, s[84:87], s88 sc0 sc1
        s_waitcnt vmcnt(0)
        v_readfirstlane_b32 s88, v58
        s_and_b32 s88, s88, 31
        s_cmp_lg_u32 s88, 31
        s_cbranch_scc1 L_na
        s_mov_b32 exec_lo, {hex((1<<max(gr,1))-1)}
        buffer_store_dword v59, v57, s[56:59], s89 offen offset:{GO} sc1
L_na:
        s_mov_b64 exec, -1
L_nb:""")
    A(f"""s_setprio 3
    s_barrier
    s_cmp_gt_u32 s3, 1
    s_cbranch_scc1 L_t3""")
    for u in range(4): A(f"ds_read_b128 v[{64+4*u}:{67+4*u}], v23 offset:{L_PART+2048*u}")
    A("""s_waitcnt lgkmcnt(2)
    v_pk_add_f32 v[64:65], v[64:65], v[68:69]
    v_pk_add_f32 v[66:67], v[66:67], v[70:71]
    s_waitcnt lgkmcnt(0)
    v_pk_add_f32 v[72:73], v[72:73], v[76:77]
    v_pk_add_f32 v[74:75], v[74:75], v[78:79]
    v_mov_b32 v8, s41
    v_pk_add_f32 v[64:65], v[64:65], v[72:73]
    v_pk_add_f32 v[66:67], v[66:67], v[74:75]""")
    for r in range(64,68): A(f"v_and_or_b32 v{r}, v{r}, s43, v8")
    if ack: stamp(1)
    A("buffer_store_dwordx4 v[64:67], v22, s[56:59], s63 offen sc1")
    if ack: A("s_waitcnt vmcnt(0)"); stamp(2)
    A("L_t3:")
    if abl==4: A("s_branch L_fin")
    stamp(5)
    if hold: A(f"L_hold:\ns_memrealtime s[92:93]\ns_waitcnt lgkmcnt(0)\ns_sub_u32 s92, s92, s64\ns_cmp_lt_u32 s92, {hold}\ns_cbranch_scc1 L_hold")
    if HB<64:
        if gr: A(f"s_lshr_b32 s88, s2, 3\ns_and_b32 s88, s88, {gr-1}\ns_lshl_b32 s88, s88, 7\ns_add_u32 s88, s88, s89\nv_mov_b32 v5, s88")
        else: A("v_mov_b32 v5, s4\nv_lshlrev_b32 v5, 2, v5")
        fpoll("L_g1",5,"s[56:59]",GO,8,g1c)
        if not ack and not st: stamp(1)
        if go2==2: A(f"s_cmp_lg_u32 s94, 0\ns_cbranch_scc1 L_ng2\ns_mov_b64 exec, {hex((1<<g2r)-1)}\nv_mov_b32 v5, s7\nbuffer_store_dword v5, {'v57' if hb else 'off'}, s[56:59], s95 {'offen' if hb else ''} offset:{GO2} sc1\ns_mov_b64 exec, -1\nL_ng2:")
    mpoll("L_p1",[("buffer_load_dwordx4 v[8:11], v6, s[56:59], s52 offen "+p1c,[8,9,10,11]),("buffer_load_dwordx4 v[12:15], v6, s[56:59], s62 offen "+p1c,[12,13,14,15])],"s41",TAGM,5,sl1)
    stamp(6)
    if go2==1: A(f"s_cmp_lg_u32 s94, 0\ns_cbranch_scc1 L_ng2\ns_mov_b64 exec, {hex((1<<g2r)-1)}\nv_mov_b32 v5, s7\nbuffer_store_dword v5, {'v57' if hb else 'off'}, s[56:59], s95 {'offen' if hb else ''} offset:{GO2} sc1\ns_mov_b64 exec, -1\nL_ng2:")
    for r in range(8,16): A(f"v_and_b32 v{r}, s43, v{r}")
    for r in range(8,16): A(f"v_mul_f32 v{r}, v{r}, v{20+(r-8)//4}")
    red8("add",list(range(8,16)))
    for r in range(8,16): A(f"v_cvt_pk_bf16_f32 v{r}, v{r}, v{r}")
    order=[(0,0),(1,0),(0,1),(1,1),(0,2),(1,2),(0,3),(1,3)]
    def mk(i):
        bp,kg=order[i]
        for k in range(4): A(f"v_and_b32 v{80+4*i+k}, v{8+4*bp+kg}, v{16+k}")
    mk(0)
    for i in range(8):
        bp,kg=order[i]
        if i<7: mk(i+1)
        else: A("s_nop 1")
        A(f"v_mfma_f32_16x16x32_bf16 v[{48+4*bp}:{51+4*bp}], v[{80+4*i}:{83+4*i}], v[{24+4*kg}:{27+4*kg}], v[{48+4*bp}:{51+4*bp}]")
    A(f"""v_mov_b32 v8, s41
    s_nop 5
    ds_write_b128 v62, v[48:51] offset:{L_RED}
    ds_write_b128 v62, v[52:55] offset:{L_RED+1024}
    s_waitcnt lgkmcnt(0)
    s_barrier
    s_cmp_gt_u32 s3, 1
    s_cbranch_scc1 L_fin""")
    for u in range(4): A(f"ds_read_b128 v[{64+4*u}:{67+4*u}], v23 offset:{L_RED+2048*u}")
    A("""s_mov_b32 exec_lo, s50
    s_mov_b32 exec_hi, s50
    s_waitcnt lgkmcnt(2)
    v_pk_add_f32 v[64:65], v[64:65], v[68:69]
    v_pk_add_f32 v[66:67], v[66:67], v[70:71]
    s_waitcnt lgkmcnt(0)
    v_pk_add_f32 v[72:73], v[72:73], v[76:77]
    v_pk_add_f32 v[74:75], v[74:75], v[78:79]
    v_pk_add_f32 v[64:65], v[64:65], v[72:73]
    v_pk_add_f32 v[66:67], v[66:67], v[74:75]""")
    for r in range(64,68): A(f"v_and_or_b32 v{r}, v{r}, s43, v8")
    if ack: stamp(3)
    A("buffer_store_dwordx4 v[64:67], v61, s[56:59], s48 offen sc1")
    if ack: A("s_waitcnt vmcnt(0)"); stamp(4)
    stamp(7); dump()
    A("s_endpgm")
    L.append(f'.section .rodata,"a"\n.p2align 6\n.amdhsa_kernel {KN}\n  .amdhsa_next_free_vgpr 256\n  .amdhsa_next_free_sgpr 96\n  .amdhsa_accum_offset 256\n  .amdhsa_group_segment_fixed_size 0\n  .amdhsa_kernarg_size 96\n  .amdhsa_user_sgpr_count 2\n  .amdhsa_user_sgpr_kernarg_segment_ptr 1\n  .amdhsa_system_sgpr_workgroup_id_x 1\n.end_amdhsa_kernel')
    return "\n".join(L)+"\n"
if __name__=="__main__":
    open("k_diag.s","w").write(gen(diag=True))
    open("k.s","w").write(gen())
    for a in sys.argv[1:]:
        kw=eval("dict(%s)"%a); nm=a.replace("=","").replace(",","_").replace("'","").replace("-","m")
        open(f"d_{nm}.s","w").write(gen(diag=True,**kw)); open(f"k_{nm}.s","w").write(gen(**kw))
```

```python
import sys
KN = "parallel_sum__sliding_block_cached__swiglu_ffn__decode_kernel"
HDR = open("parallel_sum__sliding_block_cached__swiglu_ffn__decode.s.ref").read().split("; Override launch")[0]
QG, HG, ST, P1, P2, WSN = 0x10000, 0x30000, 0x50000, 0x80000, 0x100000, 0x400000
L_RK = 34400
L_TILE, L_XN, L_Q, L_H, L_MX, L_LS, L_RED, L_PART, L_TOT = 0, 28672, 32256, 33280, 34304, 34336, 0, 34816, 43008
TAGM = 0x3ff
TAGQ = 0x3f
GO, GO2 = 0x800, 0x900
CEXP = 0x3db8aa3b
DPP = "row_mask:0xf bank_mask:0xf"
def gen(diag=False, NS=24, INFL=3, wnt="nt", spin=1<<20, B0=0, late2=1, D=3, CR=4, sl1=0, abl=0, PB=12, SB=52, sl2=0, hold=0, pre=0, pm=1, ack=0, pm2=0, prew=0, HB=59, HC=63, go2=1, N=0, NP=0, NV=0):
    L=[];
    def A(s):
        for x in s.split("\n"):
            x=x.strip()
            if x: L.append(x if x.endswith(":") else "    "+x)
    def stamp(k, early=False):
        if st and k in (4,5,6) and not early: return
        if early and not st: return
        if diag: A(f"s_memrealtime s[{64+2*k}:{65+2*k}]")
    def dump():
        if not diag: return
        A("s_mov_b64 exec, -1\ns_waitcnt lgkmcnt(0) vmcnt(0)")
        A("s_lshl_b32 s60, s2, 3\ns_add_u32 s60, s60, s3\ns_lshl_b32 s60, s60, 5\ns_add_u32 s60, s60, 0x10000000")
        A("s_add_u32 s60, s30, s60\ns_addc_u32 s61, s31, 0")
        for k in range(8): A(f"v_mov_b32 v{8+k}, s{64+2*k}")
        A("v_mov_b32 v1, 0\nglobal_store_dwordx4 v1, v[8:11], s[60:61]\nglobal_store_dwordx4 v1, v[12:15], s[60:61] offset:16")
    def srd(d, lo, hi, n): A(f"s_mov_b32 s{d}, {lo}\ns_mov_b32 s{d+1}, {hi}\ns_mov_b32 s{d+2}, {n}\ns_mov_b32 s{d+3}, 0x20000")
    def masks(base, vi, vt):
        A(f"v_and_b32 v{vt}, 1, v{vi}\nv_lshlrev_b32 v{vt}, 4, v{vt}\nv_mov_b32 v{base+3}, 0xffff\nv_lshlrev_b32 v{base+3}, v{vt}, v{base+3}")
        A(f"v_bfe_u32 v{vt}, v{vi}, 1, 2")
        for k in range(4):
            A(f"v_cmp_eq_u32 vcc, {k}, v{vt}\ns_nop 1\nv_cndmask_b32 v{base+k}, 0, v{base+3}, vcc")
    def poll(name, loads, regs, tagreg, mask, tmp):
        A(f"s_mov_b32 s40, {spin}\n{name}:")
        for x in loads: A(x)
        A("s_waitcnt vmcnt(0)")
        A(f"v_xor_b32 v{tmp}, {tagreg}, v{regs[0]}")
        for r in regs[1:]: A(f"v_bitop3_b32 v{tmp}, v{r}, {tagreg}, v{tmp} bitop3:0xbe")
        A(f"v_and_b32 v{tmp}, {mask}, v{tmp}\nv_cmp_ne_u32 vcc, 0, v{tmp}")
        A(f"s_sub_u32 s40, s40, 1\ns_cbranch_scc1 {name}_x\ns_cbranch_vccnz {name}\n{name}_x:")
    def mpoll(name, loads, tagreg, mask, tmp, sl=0):
        P=lambda u:f"s[{80+2*u}:{81+2*u}]"
        for u in range(len(loads)): A(f"s_mov_b64 {P(u)}, -1")
        A(f"s_mov_b32 s40, {spin}")
        if sl: A(f"s_branch {name}_f\n{name}:\ns_sleep {sl}\n{name}_f:")
        else: A(f"{name}:")
        for u,(x,regs) in enumerate(loads):
            A(f"s_mov_b64 exec, {P(u)}")
            if len(loads)>1: A(f"s_cbranch_execz {name}_s{u}\n{x}\n{name}_s{u}:")
            else: A(x)
        A("s_sub_u32 s40, s40, 1\ns_cselect_b64 s[90:91], 0, -1")
        for u,(x,regs) in enumerate(loads):
            if len(loads)>1: A(f"s_mov_b64 exec, {P(u)}")
            if u==0: A("s_waitcnt vmcnt(0)")
            A(f"v_xor_b32 v{tmp}, {tagreg}, v{regs[0]}")
            for r in regs[1:]: A(f"v_bitop3_b32 v{tmp}, v{r}, {tagreg}, v{tmp} bitop3:0xbe")
            if mask!=-1: A(f"v_and_b32 v{tmp}, {mask}, v{tmp}")
            A(f"v_cmp_ne_u32 {P(u)}, 0, v{tmp}")
        if len(loads)==1: A(f"s_and_b64 s[88:89], {P(0)}, s[90:91]")
        else:
            A(f"s_or_b64 s[88:89], {P(0)}, {P(1)}")
            for u in range(2,len(loads)): A(f"s_or_b64 s[88:89], s[88:89], {P(u)}")
            A("s_and_b64 s[88:89], s[88:89], s[90:91]")
        A(f"s_cbranch_scc1 {name}\ns_mov_b64 exec, -1")
    def fpoll(name, vaddr, srdr, off, r, cc='sc1'):
        A(f"s_movk_i32 s40, 2048\n{name}:\nbuffer_load_dword v{r}, v{vaddr}, {srdr}, 0 offen offset:{off} {cc}\ns_sub_u32 s40, s40, 1\ns_cbranch_scc1 {name}_x\ns_waitcnt vmcnt(0)\nv_cmp_ne_u32 vcc, s7, v{r}\ns_cbranch_vccnz {name}\n{name}_x:")
    def ctl(m, guard=True):
        if not fb: return
        srd(84,"s28","s29",256)
        if guard: A(f"s_cmp_lg_u32 s3, 3\ns_cbranch_scc1 L_nc{m}")
        A(f"""s_mov_b64 exec, 1
        v_mov_b32 v58, 1
        v_mov_b32 v59, 0
        buffer_atomic_add v58, off, s[84:87], 0 offset:16 sc0 sc1
        s_waitcnt vmcnt(0)
        v_readfirstlane_b32 s88, v58
        s_and_b32 s88, s88, 1023
        s_cmp_ge_u32 s88, {256*m+R1+RL[m]}
        s_cselect_b32 s89, 1, 0
        s_cmp_ge_u32 s88, {256*m+R2}
        s_cselect_b32 s89, 2, s89
        v_mov_b32 v58, s89
        ds_write_b32 v59, v58 offset:{L_RK}
        s_mov_b64 exec, -1
        L_nc{m}:""")
    def red8(op, regs):
        for m in ("row_half_mirror","quad_perm:[1,0,3,2]","quad_perm:[2,3,0,1]"):
            if len(regs)<3: A(f"s_nop {2-len(regs)}")
            for r in regs: A(f"v_{op}_f32_dpp v{r}, v{r}, v{r} {m} {DPP}")
    def swapred(op, regs, tmps):
        for sw in ("v_permlane16_swap_b32","v_permlane32_swap_b32"):
            for r,t in zip(regs,tmps): A(f"v_mov_b32 v{t}, v{r}")
            A("s_nop 1")
            for r,t in zip(regs,tmps): A(f"{sw} v{r}, v{t}")
            A("s_nop 1")
            for r,t in zip(regs,tmps): A(f"v_{op}_f32 v{r}, v{r}, v{t}")
    L.append(HDR.rstrip())
    L.append(f"; @launch grid=(256,1,1) block=(512,1,1) lds={L_TOT}")
    L.append(f'.amdgcn_target "amdgcn-amd-amdhsa--gfx950"\n.text\n.globl {KN}\n.p2align 8\n.type {KN},@function\n{KN}:')
    if diag:
        for k in range(8): A(f"s_mov_b64 s[{64+2*k}:{65+2*k}], 0")
    stamp(0)
    if pad and not diag: A("s_memrealtime s[64:65]")
    if late and diag: A(f"s_and_b32 s4, s2, 7\ns_cmp_lg_u32 s4, 4\ns_cbranch_scc1 L_nlate\nL_late:\ns_memrealtime s[92:93]\ns_waitcnt lgkmcnt(0)\ns_sub_u32 s92, s92, s64\ns_cmp_lt_u32 s92, {late}\ns_cbranch_scc1 L_late\nL_nlate:")
    A("""s_load_dwordx16 s[8:23], s[0:1], 0
    s_load_dwordx8 s[24:31], s[0:1], 64
    s_cmpk_ge_u32 s2, 256
    s_cbranch_scc1 L_end
    v_lshrrev_b32 v1, 6, v0
    v_and_b32 v0, 63, v0
    v_readfirstlane_b32 s3, v1
    v_and_b32 v2, 15, v0
    v_lshrrev_b32 v3, 4, v0
    s_cmp_lt_u32 s3, 4
    s_cbranch_scc1 L_helper""")
    A("""s_and_b32 s4, s2, 31
    s_lshl_b32 s4, s4, 23
    s_lshr_b32 s5, s2, 5
    s_lshl_b32 s5, s5, 18
    s_add_u32 s4, s4, s5
    s_lshl_b32 s5, s3, 11
    s_add_u32 s4, s4, s5
    s_add_u32 s4, s4, %d
    s_lshr_b32 s6, s2, 3
    s_lshl_b32 s6, s6, 13
    v_lshlrev_b32 v1, 4, v2
    v_lshl_add_u32 v1, v3, 9, v1
    s_mov_b32 s34, 0x40000
    s_mov_b32 s35, 0x20000
    s_mov_b32 s38, 0x40000
    s_mov_b32 s39, 0x20000
    s_waitcnt lgkmcnt(0)
    s_add_u32 s32, s10, s4
    s_addc_u32 s33, s11, 0
    s_add_u32 s36, s12, s4
    s_addc_u32 s37, s13, 0""" % (12288*512-4*2048))
    RB=256-8*NS
    thr=[False]
    if fb or sx: N=NP=NH; NV=0
    def sxv(): pass
    if sx:
        nib=[0xC,4,0,1,3]; dg=[int(c) for c in str(sx)[1:]]; assert len(dg)==8
        sxc=sum(nib[d]<<(4*i) for i,d in enumerate(dg)); lo=[any(nib[d]&(4<<p) for d in dg) for p in (0,1)]
        A(f"s_getreg_b32 s62, hwreg(20,0,3)\ns_lshl_b32 s62, s62, 2\ns_lshr_b32 s62, {hex(sxc)}, s62")
    def rd(z): A(f"v_mov_b32 v{z}, 0\nds_read_b32 v{z}, v{z} offset:{L_RK}")
    def ap(z): A(f"s_waitcnt lgkmcnt(0)\nv_readfirstlane_b32 s62, v{z}\ns_cmp_eq_u32 s62, 2\ns_cselect_b64 vcc, -1, 0")
    if fb: A("s_mov_b32 s62, 1\ns_mov_b64 vcc, 0")
    def issueh(h):
        n=h//2; sl=RB+8*(n%NS)+4*(h%2); sr="s[32:35]" if n<32 else "s[36:39]"
        if fb and thr[0]:
            A(f"s_cbranch_vccnz L_th{h}\ns_waitcnt vmcnt({NM-1})\ns_cmp_eq_u32 s62, 0\ns_cbranch_scc0 L_th{h}\ns_waitcnt vmcnt({NL-1})\nL_th{h}:")
        if sx and h>=NM-1:
            A(f"s_bitcmp1_b32 s62, {h%2}\ns_cbranch_scc1 L_th{h}\ns_waitcnt vmcnt({NM-1})")
            if lo[h%2]: A(f"s_bitcmp1_b32 s62, {2+h%2}\ns_cbranch_scc0 L_th{h}\ns_waitcnt vmcnt({NM-2})")
            A(f"L_th{h}:")
        A(f"buffer_load_dwordx4 v[{sl}:{sl+3}], v1, {sr}, s6 offen offset:{256*(h%2)} nt")
        if h%2: A("s_add_u32 s6, s6, 0x2000\ns_and_b32 s6, s6, 0x3ffff")
    for h in range(2*NS):
        n=h//2
        if h==0: stamp(4,True)
        if h%2==0 and (n==B0 or n==PB): A("s_barrier")
        if h==0: stamp(5,True)
        if h==NP+1: stamp(6,True)
        if NP:
            if h>=NP: A(f"s_waitcnt vmcnt({NP-1})")
        elif INFL and n>=INFL and h%2==0: A(f"s_waitcnt vmcnt({2*INFL-2})")
        thr[0]=h>=NL
        if fb and h%8==0 and h>=8: rd(62)
        if fb and h%8==1 and h>=8: ap(62)
        issueh(h)
        if h==3:
            A("s_load_dword s7, s[30:31], 0")
            A(f"v_lshrrev_b32 v4, 3, v2\nv_lshlrev_b32 v4, 9, v4\nv_lshl_add_u32 v4, v2, 4, v4\nv_xor_b32 v5, 0x200, v4")
    stamp(1)
    A("s_waitcnt lgkmcnt(0)\ns_barrier")
    A(f"ds_read_b128 v[8:11], v4 offset:{L_Q}\nds_read_b128 v[12:15], v4 offset:{L_Q+256}\nds_read_b128 v[16:19], v5 offset:{L_Q}\nds_read_b128 v[20:23], v5 offset:{L_Q+256}")
    A("s_add_u32 s7, s7, 1\ns_waitcnt lgkmcnt(0)")
    stamp(2)
    SC=24
    def fin(n):
        u,w=(4,5) if n%2==0 else (6,7); s=SC+n
        return [f"v_add_f32_dpp v{s}, v{w}, v{u} row_ror:8 {DPP}",
                f"v_add_f32_dpp v{s}, v{s}, v{s} row_half_mirror {DPP}",
                f"v_add_f32_dpp v{s}, v{s}, v{s} quad_perm:[1,0,3,2] {DPP}",
                f"v_add_f32_dpp v{s}, v{s}, v{s} quad_perm:[2,3,0,1] {DPP}",
                f"v_cvt_pk_bf16_f32 v{s}, v{s}, v{s}",
                f"v_and_b32 v{s}, 0xffff0000, v{s}"]
    def issuedh(h):
        if N: return min(128, max(h+(min(NV,N+h-64) if NV and h>=64 else N), 2*NS+h//CR))
        n=h//2; return 2*min(64, max(n+D, NS+n//CR))
    def waith(h):
        if N: A(f"s_waitcnt vmcnt({issuedh(h)-h-1})")
        elif h%2==0: A(f"s_waitcnt vmcnt({issuedh(h)-h-2})")
    def after(h):
        for m in range(issuedh(h), issuedh(h+1)): issueh(m)
    for n in range(32):
        sl=RB+8*(n%NS); u,w=(4,5) if n%2==0 else (6,7)
        A(f"v_mov_b32 v{u}, 0\nv_mov_b32 v{w}, 0")
        pend=fin(n-1) if n else []
        if fb and n in (8,16,22,27): rd(62)
        if fb and n-1 in (8,16,22,27): ap(62)
        for d in range(8):
            if d%4==0: waith(2*n+d//4)
            A(f"v_dot2c_f32_bf16 v{u}, v{sl+d}, v{8+d}\nv_dot2c_f32_bf16 v{w}, v{sl+d}, v{16+d}")
            if pend and d>=1: A(pend.pop(0))
            if d%4==3: after(2*n+d//4)
    A("s_nop 2")
    for x in fin(31): A(x+"\ns_nop 1")
    stamp(3)
    A(f"v_max3_f32 v4, v{SC}, v{SC+1}, v{SC+2}\nv_max3_f32 v5, v{SC+3}, v{SC+4}, v{SC+5}")
    for k in range(6,30,4): A(f"v_max3_f32 v4, v4, v{SC+k}, v{SC+k+1}\nv_max3_f32 v5, v5, v{SC+k+2}, v{SC+k+3}")
    A(f"v_max3_f32 v4, v4, v{SC+30}, v{SC+31}\nv_max_f32 v4, v4, v5")
    swapred("max",[4],[5])
    A(f"v_lshrrev_b32 v6, 3, v2\nv_lshlrev_b32 v6, 4, v6\ns_lshl_b32 s4, s3, 2\nv_add_u32 v7, s4, v6")
    A(f"ds_write_b32 v7, v4 offset:{L_MX-16}\ns_waitcnt lgkmcnt(0)\ns_barrier")
    A(f"ds_read_b128 v[8:11], v6 offset:{L_MX}")
    if fb: rd(22)
    masks(16,2,5)
    for k in range(8): A(f"v_mov_b32 v{56+k}, 0")
    A(f"s_mov_b32 s4, {CEXP}\ns_waitcnt lgkmcnt(0)\nv_max3_f32 v4, v8, v9, v10\nv_max_f32 v4, v4, v11")
    for k in range(32): A(f"v_sub_f32 v{SC+k}, v{SC+k}, v4")
    for k in range(32): A(f"v_mul_f32 v{SC+k}, s4, v{SC+k}")
    for k in range(32): A(f"v_exp_f32 v{SC+k}, v{SC+k}")
    A(f"v_add_f32 v4, v{SC}, v{SC+1}\nv_add_f32 v5, v{SC+2}, v{SC+3}")
    for k in range(4,32,2): A(f"v_add_f32 v4, v4, v{SC+k}\nv_add_f32 v5, v5, v{SC+k+1}")
    A("v_add_f32 v4, v4, v5")
    swapred("add",[4],[5])
    A(f"ds_write_b32 v7, v4 offset:{L_LS-16}")
    for k in range(32): A(f"v_cvt_pk_bf16_f32 v{SC+k}, v{SC+k}, v{SC+k}")
    A("s_waitcnt lgkmcnt(0)\ns_barrier")
    def mkA(n):
        a=8+4*(n%2)
        for k in range(4): A(f"v_and_b32 v{a+k}, v{SC+n}, v{16+k}")
    if fb:
        ap(22)
    if sx: sxv()
    mkA(0)
    A(f"v_lshrrev_b32 v4, 1, v3\nv_lshlrev_b32 v4, 10, v4\nv_and_b32 v5, 1, v3\nv_lshl_add_u32 v4, v5, 4, v4\nv_lshl_add_u32 v4, v2, 5, v4\ns_lshl_b32 s4, s3, 11\nv_add_u32 v4, s4, v4")
    for n in range(32,64):
        sl=RB+8*(n%NS); a=8+4*(n%2)
        if n==SB: A("s_barrier")
        if fb and n in (35,38,41,44): rd(22)
        if fb and n-1 in (35,38,41,44): ap(22)
        if n==HB and hb: A('s_barrier')
        if n==HB and not hb:
            srd(44,"s28","s29",256); srd(48,"s30","s31",WSN)
            A("s_and_b32 s4, s2, 7\ns_lshl_b32 s5, s4, 5\ns_lshl_b32 s4, s4, 2\ns_cmp_lg_u32 s3, 4\ns_cbranch_scc1 L_na\ns_mov_b64 exec, 1\nv_mov_b32 v6, 1\nv_mov_b32 v7, s7\nbuffer_atomic_add v6, off, s[44:47], s5 sc0 sc1\ns_mov_b64 exec, -1\nL_na:")
        if n<63: mkA(n-32+1)
        waith(2*n)
        A(f"v_mfma_f32_16x16x32_bf16 v[56:59], v[{a}:{a+3}], v[{sl}:{sl+3}], v[56:59]")
        after(2*n); waith(2*n+1)
        A(f"v_mfma_f32_16x16x32_bf16 v[60:63], v[{a}:{a+3}], v[{sl+4}:{sl+7}], v[60:63]")
        if n==HC and HB<64 and not hb:
            assert HC==63 or 2*HC+1>=issuedh(2*HB)
            A(f"v_readfirstlane_b32 s5, v6\ns_cmp_lg_u32 s3, 4\ns_cbranch_scc1 L_nb\ns_and_b32 s5, s5, 31\ns_cmp_lg_u32 s5, 31\ns_cbranch_scc1 L_nb\ns_mov_b64 exec, 1\nbuffer_store_dword v7, off, s[48:51], s4 offset:{GO} sc1\ns_mov_b64 exec, -1\nL_nb:")
        after(2*n+1)
    stamp(4)
    A(f"s_nop 6\nds_write_b128 v4, v[56:59] offset:{L_PART-8192}\nds_write_b128 v4, v[60:63] offset:{L_PART-8192+512}\ns_waitcnt lgkmcnt(0)\ns_barrier")
    if abl: A("s_branch L_fin")
    A("""s_cmp_lg_u32 s3, 4
    s_cbranch_scc1 L_fin
    s_cmpk_ge_u32 s2, 128
    s_cbranch_scc1 L_fin
    s_and_b32 s4, s2, 0x62
    s_cmp_eq_u32 s4, 0x62
    s_cbranch_scc1 L_fin""")
    srd(32,"s30","s31",WSN)
    if pm2: A(f"s_lshr_b32 s4, s2, 5\ns_lshl_b32 s4, s4, 17\ns_and_b32 s5, s2, 31\ns_lshl_b32 s5, s5, 6\ns_add_u32 s4, s4, s5\nv_lshrrev_b32 v1, 2, v0\nv_and_b32 v4, 3, v0\nv_lshlrev_b32 v4, 4, v4\nv_lshl_add_u32 v1, v1, 11, v4")
    else: A("s_lshl_b32 s4, s2, 12\nv_lshlrev_b32 v1, 4, v0")
    for u in range(4): A(f"s_add_u32 s{48+u}, s4, {P2+u*(32768 if pm2 else 1024)}")
    A(f"""
    s_and_b32 s41, s7, {TAGM}""")
    A("""s_bfe_u32 s42, s2, 0x20003
    s_mul_i32 s42, s42, 896
    s_lshr_b32 s43, s2, 5
    s_lshl_b32 s43, s43, 8
    s_add_u32 s42, s42, s43
    s_and_b32 s43, s2, 3
    s_lshl_b32 s43, s43, 6
    s_add_u32 s42, s42, s43
    s_and_b32 s43, s2, 4
    s_lshl_b32 s43, s43, 1
    s_add_u32 s42, s42, s43
    v_and_b32 v4, 3, v0
    v_lshlrev_b32 v4, 4, v4""")
    srd(36,"s8","s9",3584); srd(44,"s26","s27",3584)
    A("buffer_load_dwordx2 v[6:7], v4, s[36:39], s42 offen")
    A(f"s_mov_b32 s43, {~TAGM&0xffffffff}\nv_and_b32 v5, 7, v0\nv_lshlrev_b32 v5, 2, v5\ns_lshr_b32 s5, s2, 3\ns_and_b32 s5, s5, {g2r-1}\ns_lshl_b32 s5, s5, 7\nv_add_u32 v5, s5, v5\ns_setprio 3\ns_barrier")
    if go2: fpoll("L_g2",5,"s[32:35]",GO if go2==3 else GO2,8)
    stamp(6)
    mpoll("L_p2",[(f"buffer_load_dwordx4 v[{8+4*u}:{11+4*u}], v1, s[32:35], s{48+u} offen sc1",list(range(8+4*u,12+4*u))) for u in range(4)],"s41",TAGM,5,sl2)
    stamp(5)
    for r in range(8,24): A(f"v_and_b32 v{r}, s43, v{r}")
    A("v_pk_add_f32 v[8:9], v[8:9], v[12:13]\nv_pk_add_f32 v[10:11], v[10:11], v[14:15]\nv_pk_add_f32 v[16:17], v[16:17], v[20:21]\nv_pk_add_f32 v[18:19], v[18:19], v[22:23]\nv_pk_add_f32 v[8:9], v[8:9], v[16:17]\nv_pk_add_f32 v[10:11], v[10:11], v[18:19]")
    A("""v_lshlrev_b32 v24, 16, v6
    v_and_b32 v25, 0xffff0000, v6
    v_lshlrev_b32 v26, 16, v7
    v_and_b32 v27, 0xffff0000, v7""")
    for m in ("row_ror:4","row_ror:8"):
        for r in range(8,12): A(f"v_add_f32_dpp v{r}, v{r}, v{r} {m} {DPP}")
    swapred("add",[8,9,10,11],[12,13,14,15])
    A("""v_pk_add_f32 v[8:9], v[8:9], v[24:25]
    v_pk_add_f32 v[10:11], v[10:11], v[26:27]
    v_cvt_pk_bf16_f32 v8, v8, v9
    v_cvt_pk_bf16_f32 v9, v10, v11
    s_mov_b64 exec, 15
    buffer_store_dwordx2 v[8:9], v4, s[44:47], s42 offen OSC
    s_cmp_lg_u32 s2, 0
    s_cbranch_scc1 L_fin
    s_mov_b64 exec, 1
    v_mov_b32 v5, s7
    buffer_store_dword v5, v4, s[32:35], 0 offen OSC""".replace("OSC",osc))
    if pad: A(f"L_pad:\ns_memrealtime s[92:93]\ns_waitcnt lgkmcnt(0)\ns_sub_u32 s92, s92, s64\ns_cmp_lt_u32 s92, {pad}\ns_cbranch_scc1 L_pad")
    A("L_fin:")
    stamp(7); dump()
    A("L_end:\ns_endpgm")
    A("L_helper:\ns_setprio 3")
    if abl==1: A("s_waitcnt lgkmcnt(0)\ns_branch L_fin")
    A("""s_and_b32 s4, s2, 7
    s_lshr_b32 s5, s2, 3""")
    A("s_cmp_lg_u32 s3, 0\ns_cbranch_scc1 L_h123n")
    A(f"""v_mul_u32_u24 v4, 896, v3
    v_lshl_add_u32 v4, v2, 3, v4
    v_lshrrev_b32 v5, 3, v0
    v_and_b32 v6, 7, v0
    v_and_b32 v7, 2, v5
    v_xor_b32 v6, v6, v7
    v_lshlrev_b32 v6, 4, v6
    s_mov_b32 m0, 0
    s_mov_b32 s39, 0x20000
    s_cmpk_ge_u32 s2, 240
    s_cbranch_scc1 L_h123n
    s_cmpk_ge_u32 s2, 128
    s_cbranch_scc1 L_tf
    s_movk_i32 s50, 8192
    s_lshr_b32 s54, s5, 3
    {"s_and_b32 s51, s5, 7" if lat!=2 else "s_mov_b32 s51, s4"}
    {("s_mov_b32 s55, s4","s_add_u32 s55, s4, s5","s_mov_b32 s55, s5","s_lshl2_add_u32 s55, s54, s5")[lat]}
    {"s_add_u32 s55, s55, s4" if lat==3 else ""}
    s_and_b32 s55, s55, 7
    s_lshl_b32 s52, s55, 3
    s_add_u32 s52, s52, s51
    s_lshl_b32 s52, s52, 7
    s_lshl_b32 s53, s55, 12
    s_lshl_b32 s51, s51, 8
    s_add_u32 s53, s53, s51
    s_lshl_b32 s51, s54, 11
    s_add_u32 s53, s53, s51
    s_add_u32 s53, s53, {QG}
    v_and_b32 v8, 3, v2
    v_lshlrev_b32 v8, 15, v8
    v_lshrrev_b32 v9, 2, v2
    v_lshl_add_u32 v8, v9, 6, v8
    v_lshl_add_u32 v60, v3, 4, v8
    s_waitcnt lgkmcnt(0)
    s_mov_b64 s[36:37], s[14:15]
    s_branch L_tg
    L_tf:
    s_movk_i32 s50, 3584
    s_bfe_u32 s54, s2, 0x10001
    s_bfe_u32 s51, s2, 0x50002
    s_lshl_b32 s52, s51, 7
    s_lshl_b32 s53, s51, 12
    s_and_b32 s51, s2, 1
    s_lshl_b32 s51, s51, 8
    s_add_u32 s53, s53, s51
    s_lshl_b32 s51, s54, 7
    s_add_u32 s53, s53, s51
    s_add_u32 s53, s53, {HG}
    v_and_b32 v8, 3, v2
    v_lshlrev_b32 v8, 5, v8
    v_lshrrev_b32 v9, 2, v2
    v_lshl_add_u32 v8, v9, 10, v8
    v_lshrrev_b32 v9, 1, v3
    v_lshl_add_u32 v8, v9, 9, v8
    v_and_b32 v9, 1, v3
    v_lshl_add_u32 v60, v9, 4, v8
    s_bitcmp1_b32 s2, 0
    s_waitcnt lgkmcnt(0)
    s_cselect_b64 s[36:37], s[22:23], s[20:21]
    L_tg:
    s_mul_i32 s38, s50, 448
    s_mul_i32 s51, s50, 224
    s_mul_i32 s51, s51, s54
    s_add_u32 s52, s52, s51
    {"s_and_b32 s52, s2, 127" if xb else ""}
    {"s_lshr_b32 s51, s2, 7" if xb else ""}
    {"s_lshr_b32 s52, s52, s51" if xb else ""}
    {"s_mul_i32 s52, s52, 28672" if xb else ""}
    {"s_movk_i32 s50, 128" if xb else ""}
    {"s_mov_b32 s38, 0" if xb==2 else ""}
    v_mul_u32_u24 v5, s50, v5
    s_lshl_b32 s50, s50, 3
    v_add_u32 v5, v5, v6
    v_xor_b32 v6, 64, v5""")
    stamp(4,True)
    srd(32,"s8","s9",3584)
    for u in range(7): A(f"buffer_load_dwordx2 v[{64+2*u}:{65+2*u}], v4, s[32:35], 0 offen offset:{128*u}")
    for t in range(28):
        A(f"buffer_load_dwordx4 v{5+t%2}, s[36:39], s52 offen {wnt} lds")
        if t<27: A("s_add_u32 m0, m0, 1024\ns_add_u32 s52, s52, s50")
    if B0>=0: A("s_barrier")
    A("s_load_dword s7, s[30:31], 0")
    srd(56,"s30","s31",WSN)
    A("s_waitcnt vmcnt(28)")
    stamp(1)
    X=80
    for u in range(14): A(f"v_lshlrev_b32 v{X+2*u}, 16, v{64+u}\nv_and_b32 v{X+2*u+1}, 0xffff0000, v{64+u}")
    A(f"v_pk_add_f32 v[8:9], v[{X}:{X+1}], v[{X+2}:{X+3}]")
    for u in range(2,14): A(f"v_pk_add_f32 v[8:9], v[8:9], v[{X+2*u}:{X+2*u+1}]")
    A("v_add_f32 v8, v8, v9")
    def rowred(r):
        for m in (8,4,2,1): A(f"s_nop 1\nv_add_f32_dpp v{r}, v{r}, v{r} row_ror:{m} {DPP}")
    rowred(8)
    A("v_mul_f32 v8, 0x3b124925, v8\nv_mov_b32 v10, 0\nv_mov_b32 v11, 0")
    for u in range(14):
        A(f"v_sub_f32 v12, v{X+2*u}, v8\nv_sub_f32 v13, v{X+2*u+1}, v8\nv_fmac_f32 v10, v12, v12\nv_fmac_f32 v11, v13, v13")
    A("v_add_f32 v10, v10, v11")
    rowred(10)
    A("""v_mul_f32 v10, 0x3b124925, v10
    v_cvt_pk_bf16_f32 v8, v8, v10
    v_and_b32 v10, 0xffff0000, v8
    v_lshlrev_b32 v8, 16, v8
    v_add_f32 v10, 0x3727c5ac, v10
    v_cvt_pk_bf16_f32 v10, v10, v10
    v_and_b32 v10, 0xffff0000, v10
    v_sqrt_f32 v10, v10
    s_nop 0
    v_cvt_pk_bf16_f32 v10, v10, v10
    v_and_b32 v10, 0xffff0000, v10
    v_rcp_f32 v10, v10
    s_mul_i32 s55, s54, 448""")
    for u in range(14):
        a,b=X+2*u,X+2*u+1
        A(f"v_sub_f32 v{a}, v{a}, v8\nv_sub_f32 v{b}, v{b}, v8\nv_cvt_pk_bf16_f32 v{a}, v{a}, v{b}\nv_and_b32 v{b}, 0xffff0000, v{a}\nv_lshlrev_b32 v{a}, 16, v{a}\nv_mul_f32 v{a}, v{a}, v10\nv_mul_f32 v{b}, v{b}, v10\nv_cvt_pk_bf16_f32 v{64+u}, v{a}, v{b}")
    for u in range(7): A(f"ds_write_b64 v4, v[{64+2*u}:{65+2*u}] offset:{L_XN+128*u}")
    A("""v_and_b32 v5, 3, v2
    v_lshlrev_b32 v6, 3, v5
    v_mul_u32_u24 v5, 896, v5
    v_lshl_add_u32 v5, v3, 4, v5
    v_add_u32 v5, s55, v5
    v_lshrrev_b32 v7, 2, v2
    v_lshl_add_u32 v6, v7, 7, v6
    v_lshl_add_u32 v6, v3, 10, v6
    v_lshrrev_b32 v7, 3, v2
    v_lshl_add_u32 v6, v7, 5, v6
    v_and_b32 v7, 1, v3
    v_lshl_add_u32 v56, v7, 6, v6
    v_xor_b32 v57, 32, v56
    v_xor_b32 v58, 64, v56
    v_xor_b32 v59, 96, v56
    s_waitcnt lgkmcnt(0)""")
    for t in range(7): A(f"ds_read_b128 v[{64+4*t}:{67+4*t}], v5 offset:{L_XN+64*t}")
    A(f"""s_add_u32 s7, s7, 1
    s_and_b32 s41, s7, {TAGQ}
    s_mov_b32 s43, {~TAGQ&0xffffffff}
    v_lshrrev_b32 v7, 2, v2
    v_cmp_eq_u32 vcc, 1, v7
    v_cmp_eq_u32 s[44:45], 2, v7
    v_cmp_eq_u32 s[46:47], 3, v7
    v_mov_b32 v7, s41""")
    def trr(t):
        A(f"s_waitcnt vmcnt({24-4*t})")
        if t==6: stamp(2)
        for c in range(4):
            r=96+16*t+4*c
            A(f"ds_read_b64_tr_b16 v[{r}:{r+1}], v{56+c} offset:{4096*t}\nds_read_b64_tr_b16 v[{r+2}:{r+3}], v{56+c} offset:{4096*t+512}")
    trr(0)
    for t in range(7):
        if t<6: trr(t+1)
        A(f"s_waitcnt lgkmcnt({8 if t<6 and not (diag and t==5) else 0})")
        for c in range(4):
            r=96+16*t+4*c
            A(f"v_mfma_f32_16x16x32_bf16 v[{8+4*c}:{11+4*c}], v[{r}:{r+3}], v[{64+4*t}:{67+4*t}], "+("0" if t==0 else f"v[{8+4*c}:{11+4*c}]"))
    A("s_nop 6")
    for c,m in ((1,"vcc"),(2,"s[44:45]"),(3,"s[46:47]")):
        if c==3: A("s_nop 0")
        for k in range(4): A(f"v_cndmask_b32 v{8+k}, v{8+k}, v{8+4*c+k}, {m}")
    for k in range(4): A(f"v_add_u32 v{8+k}, {(TAGQ+1)//2}, v{8+k}")
    for k in range(4): A(f"v_and_or_b32 v{8+k}, v{8+k}, s43, v7")
    if not xa&1: A("buffer_store_dwordx4 v[8:11], v60, s[56:59], s53 offen sc1")
    stamp(3)
    A("s_barrier\ns_branch L_hb1")
    if not reord:
        A("L_h123n:")
        if B0>=0: A("s_barrier")
    A("L_h123:\ns_waitcnt lgkmcnt(0)\ns_load_dword s7, s[30:31], 0")
    srd(56,"s30","s31",WSN)
    A(f"""s_and_b32 s51, s2, 31
    s_lshl_b32 s51, s51, 12
    s_add_u32 s51, s51, {QG}
    v_lshlrev_b32 v5, 4, v0
    v_lshlrev_b32 v6, 3, v0
    s_mov_b32 s43, {~TAGQ&0xffffffff}
    s_waitcnt lgkmcnt(0)
    s_add_u32 s7, s7, 1
    s_and_b32 s41, s7, {TAGQ}""")
    ctl(0)
    A("s_barrier")
    ctl(1)
    A("s_cmp_lg_u32 s3, 2\ns_cbranch_scc1 L_hb1")
    if xa: A("s_branch L_hb1")
    mpoll("L_pq",[(f"buffer_load_dwordx4 v[{8+4*u}:{11+4*u}], v5, s[56:59], s51 offen offset:{1024*u} sc1",list(range(8+4*u,12+4*u))) for u in range(4)],"s41",TAGQ,7)
    stamp(3)
    for r in range(8,24): A(f"v_and_b32 v{r}, s43, v{r}")
    for r in range(8,16,2): A(f"v_pk_add_f32 v[{r}:{r+1}], v[{r}:{r+1}], v[{r+8}:{r+9}]")
    A(f"""v_cvt_pk_bf16_f32 v8, v8, v9
    v_cvt_pk_bf16_f32 v9, v10, v11
    v_cvt_pk_bf16_f32 v10, v12, v13
    v_cvt_pk_bf16_f32 v11, v14, v15
    ds_write_b64 v6, v[8:9] offset:{L_Q}
    ds_write_b64 v6, v[10:11] offset:{L_Q+512}
    s_waitcnt lgkmcnt(0)
    L_hb1:
    s_barrier
    s_setprio 0""")
    if abl==2: A("s_branch L_fin")
    ctl(2)
    A("""s_and_b32 s49, s5, 3
    s_andn2_b32 s5, s5, 3
    s_add_u32 s5, s5, s3
    s_lshl_b32 s6, s4, 5
    s_add_u32 s6, s6, s5
    s_mul_i32 s48, s4, 28
    s_min_u32 s51, s5, 27
    s_add_u32 s48, s48, s51""")
    A("""s_mul_i32 s51, s6, 14336
    s_add_u32 s36, s16, s51
    s_addc_u32 s37, s17, 0
    s_sub_u32 s38, %d, s51
    s_mov_b32 s39, 0x20000
    s_mul_i32 s51, s48, 7168
    s_add_u32 s44, s24, s51
    s_addc_u32 s45, s25, 0
    s_sub_u32 s46, %d, s51
    s_cmp_lt_u32 s5, 28
    s_cselect_b32 s46, s46, 0
    s_mov_b32 s47, 0x20000
    s_lshl_b32 s51, s49, 8
    v_lshl_add_u32 v5, v2, 4, s51
    v_mul_u32_u24 v6, 1792, v3
    v_add_u32 v7, v5, v6
    v_add_u32 v5, v7, v6""" % (4096*896, 1792*896))
    for k in range(24): A(f"v_mov_b32 v{24+k}, 0")
    A("s_cmp_eq_u32 s49, 3\ns_cselect_b32 s50, 0x00ff00ff, -1\ns_mov_b32 exec_lo, s50\ns_mov_b32 exec_hi, s50")
    for k in range(4): A(f"buffer_load_dwordx4 v[{24+4*k}:{27+4*k}], v5, s[36:39], 0 offen offset:{896*k} nt")
    for k in range(2): A(f"buffer_load_dwordx4 v[{40+4*k}:{43+4*k}], v7, s[44:47], 0 offen offset:{896*k} nt")
    A("s_mov_b64 exec, -1")
    masks(16,2,5)
    A(f"""v_and_b32 v5, 31, v0
    v_lshlrev_b32 v5, 4, v5
    s_lshl_b32 s51, s48, 9
    s_add_u32 s51, s51, {HG}""")
    mpoll("L_ph",[("buffer_load_dwordx4 v[8:11], v5, s[56:59], s51 offen sc1",[8,9,10,11])],"s41",TAGQ,7,slp)
    for r in range(8,12): A(f"v_and_b32 v{r}, s43, v{r}")
    A("v_and_b32 v5, 1, v0\nv_lshlrev_b32 v5, 4, v5\nv_and_b32 v6, 6, v0\nv_lshl_add_u32 v5, v6, 5, v5\ns_lshl_b32 s51, s3, 8\nv_add_u32 v5, s51, v5")
    for r in range(8,12): A(f"v_add_f32_dpp v{r}, v{r}, v{r} row_ror:8 {DPP}")
    for r in range(8,12): A(f"v_cvt_pk_bf16_f32 v{r}, v{r}, v{r}")
    for r in range(8,12): A(f"v_and_b32 v{r}, 0xffff0000, v{r}")
    for r in range(8,12): A(f"v_mov_b32 v{r+4}, v{r}")
    A("s_nop 1")
    for r in range(8,12): A(f"v_permlane16_swap_b32 v{r}, v{r+4}")
    A("s_nop 1")
    for r in range(8,12): A(f"v_mul_f32 v{r+56}, 0xbfb8aa3b, v{r}")
    for r in range(8,12): A(f"v_exp_f32 v{r+56}, v{r+56}")
    for r in range(8,12): A(f"v_add_f32 v{r+56}, 1.0, v{r+56}")
    for r in range(8,12): A(f"v_rcp_f32 v{r+56}, v{r+56}")
    for r in range(8,12): A(f"v_mul_f32 v{r}, v{r+56}, v{r}")
    for r in range(8,12): A(f"v_cvt_pk_bf16_f32 v{r}, v{r}, v{r}")
    for r in range(8,12): A(f"v_and_b32 v{r}, 0xffff0000, v{r}")
    for r in range(8,12): A(f"v_mul_f32 v{r}, v{r}, v{r+4}")
    for r in range(8,12): A(f"v_cvt_pk_bf16_f32 v{r}, v{r}, v{r}")
    A(f"ds_write_b128 v5, v[8:11] offset:{L_H}\ns_waitcnt lgkmcnt(0)")
    A(f"""v_lshrrev_b32 v4, 3, v2
    v_lshlrev_b32 v5, 6, v4
    v_lshl_add_u32 v5, v3, 3, v5
    v_add_u32 v5, s51, v5
    ds_read_b64 v[8:9], v5 offset:{L_H}
    ds_read_b64 v[10:11], v5 offset:{L_H+128}
    s_and_b32 s41, s7, {TAGM}
    s_mov_b32 s43, {~TAGM&0xffffffff}
    s_waitcnt lgkmcnt(0) vmcnt(0)""")
    for q in range(4):
        for k in range(4): A(f"v_and_b32 v{64+4*q+k}, v{8+q}, v{16+k}")
    A("""s_nop 1
    v_mfma_f32_16x16x32_bf16 v[48:51], v[64:67], v[40:43], 0
    v_mfma_f32_16x16x32_bf16 v[52:55], v[72:75], v[40:43], 0
    v_mfma_f32_16x16x32_bf16 v[48:51], v[68:71], v[44:47], v[48:51]
    v_mfma_f32_16x16x32_bf16 v[52:55], v[76:79], v[44:47], v[52:55]""")
    A(f"""v_and_b32 v5, 7, v2
    v_lshl_add_u32 v4, v4, 6, v5
    s_lshl_b32 s51, s4, 4
    s_lshr_b32 s52, s5, 4
    s_add_u32 s51, s51, s52
    v_lshl_add_u32 v4, v4, 1, s51
    v_lshlrev_b32 v5, 4, v4
    v_lshlrev_b32 v6, {11 if pm else 6}, v2
    v_lshl_add_u32 v6, v3, 4, v6
    s_lshl_b32 s52, s4, 16
    s_lshl_b32 s53, s5, {6 if pm else 11}
    s_add_u32 s52, s52, s53
    s_add_u32 s52, s52, {P1}
    s_add_u32 s62, s52, {32768 if pm else 1024}
    s_and_b32 s54, s2, 31
    s_lshl_b32 s54, s54, 3
    s_lshr_b32 s55, s2, 5
    s_add_u32 s54, s54, s55
    s_lshr_b32 s94, s2, 3
    s_xor_b32 s95, s3, 3
    s_or_b32 s94, s94, s95
    s_lshl_b32 s95, s4, 2
    s_mov_b32 s42, {ST}""")
    A(f"""v_lshrrev_b32 v22, 2, v0
    v_and_b32 v8, 3, v0
    v_lshlrev_b32 v8, 4, v8
    v_lshl_add_u32 v61, v22, {6 if pm2 else 12}, v8
    v_lshl_add_u32 v22, v22, {6 if pm else 11}, v8
    s_lshl_b32 s48, s49, 17
    s_lshl_b32 s51, s3, {10 if pm2 else 16}
    s_add_u32 s48, s48, s51
    s_lshr_b32 s51, s6, 2
    s_lshl_b32 s51, s51, {11 if pm2 else 6}
    s_add_u32 s48, s48, s51
    s_add_u32 s48, s48, {P2}
    s_lshl_b32 s63, s4, 16
    s_lshl_b32 s51, s3, {10 if pm else 15}
    s_add_u32 s63, s63, s51
    s_and_b32 s51, s2, 24
    s_lshr_b32 s53, s2, 5
    s_add_u32 s51, s51, s53
    s_lshl_b32 s51, s51, {11 if pm else 6}
    s_add_u32 s63, s63, s51
    s_add_u32 s63, s63, {P1}
    s_lshl_b32 s51, s3, 10
    v_lshl_add_u32 v23, v0, 4, s51
    v_add_u32 v62, s51, v23""")
    if prew:
        A("s_cmp_gt_u32 s3, 1\ns_cbranch_scc1 L_npw\nv_not_b32 v8, s41\nv_not_b32 v9, s41\nv_not_b32 v10, s41\nv_not_b32 v11, s41")
        if prew&1: A("buffer_store_dwordx4 v[8:11], v22, s[56:59], s63 offen sc1")
        if prew&2: A("buffer_store_dwordx4 v[8:11], v61, s[56:59], s48 offen sc1")
        A("s_waitcnt vmcnt(0)\nL_npw:")
    if pre&1: A("buffer_load_dwordx4 v[8:11], v6, s[56:59], s52 offen sc1\nbuffer_load_dwordx4 v[12:15], v6, s[56:59], s62 offen sc1")
    if pre&2: A(f"s_and_b32 s55, s2, 127\ns_lshl_b32 s55, s55, 2\ns_add_u32 s55, s55, s3\ns_lshl_b32 s55, s55, 10\ns_add_u32 s55, s55, {P2}\nv_lshlrev_b32 v7, 4, v0\nbuffer_load_dwordx4 v[8:11], v7, s[56:59], s55 offen sc1")
    if pre: A("s_waitcnt vmcnt(0)")
    A(f"""s_barrier
    s_barrier
    s_cmp_lg_u32 s3, 3
    s_cbranch_scc1 L_st
    v_lshlrev_b32 v7, 4, v0
    s_mov_b64 exec, 3
    ds_read_b128 v[8:11], v7 offset:{L_MX}
    ds_read_b128 v[12:15], v7 offset:{L_LS}
    s_lshl_b32 s55, s54, 5
    s_add_u32 s55, s55, {ST}
    s_waitcnt lgkmcnt(0)
    v_max3_f32 v8, v8, v9, v10
    v_add_f32 v12, v12, v13
    v_add_f32 v14, v14, v15
    v_max_f32 v8, v8, v11
    v_add_f32 v9, v12, v14
    v_mov_b32 v10, s7
    v_mov_b32 v11, s7
    buffer_store_dwordx4 v[8:11], v7, s[56:59], s55 offen sc1
    s_mov_b64 exec, -1""")
    ctl(3,False)
    A("L_st:")
    if abl==3: A("s_branch L_fin")
    A(f"s_mov_b32 s55, {ST+4096}")
    A("s_barrier")
    mpoll("L_ps",[("buffer_load_dwordx4 v[8:11], v5, s[56:59], s42 offen sc1",[10,11]),("buffer_load_dwordx4 v[12:15], v5, s[56:59], s55 offen sc1",[14,15])],"s7",-1,7,slp)
    stamp(4)
    A("v_mov_b32 v10, v12\nv_mov_b32 v11, v13")
    A("v_mov_b32 v12, v8\nv_mov_b32 v13, v10\ns_nop 0")
    red8("max",[12,13])
    A(f"""s_mov_b32 s55, {CEXP}
    v_sub_f32 v8, v8, v12
    v_sub_f32 v10, v10, v13
    v_mul_f32 v8, s55, v8
    v_mul_f32 v10, s55, v10
    v_exp_f32 v8, v8
    v_exp_f32 v10, v10
    s_nop 0
    v_mul_f32 v9, v9, v8
    v_mul_f32 v11, v11, v10
    s_nop 0""")
    red8("add",[9,11])
    A("""v_rcp_f32 v9, v9
    v_rcp_f32 v11, v11
    s_nop 0
    v_mul_f32 v20, v8, v9
    v_mul_f32 v21, v10, v11""")
    if hb:
        srd(84,"s28","s29",256)
        A(f"""s_lshl_b32 s88, s4, 5
        s_lshl_b32 s89, s4, {12 if gr else 2}
        s_add_u32 s89, s89, {0x1000-GO if gr else 0}
        v_mbcnt_lo_u32_b32 v57, -1, 0
        v_lshlrev_b32 v57, 7, v57
        v_mov_b32 v58, 1
        v_mov_b32 v59, s7
        s_setprio 3
        s_barrier
        s_cmp_lg_u32 s3, 3
        s_cbranch_scc1 L_nb
        s_mov_b64 exec, 1
        buffer_atomic_add v58, off, s[84:87], s88 sc0 sc1
        s_waitcnt vmcnt(0)
        v_readfirstlane_b32 s88, v58
        s_and_b32 s88, s88, 31
        {f"v_mov_b32 v58, s88{chr(10)}ds_write_b32 v57, v58 offset:{L_RK}" if T else ""}
        s_cmp_lg_u32 s88, 31
        s_cbranch_scc1 L_na
        s_mov_b32 exec_lo, {hex((1<<max(gr,1))-1)}
        buffer_store_dword v59, v57, s[56:59], s89 offen offset:{GO} sc1
L_na:
        s_mov_b64 exec, -1
        {"s_waitcnt lgkmcnt(0)" if T else ""}
L_nb:""")
    if T: A("v_mov_b32 v58, 0")
    A(f"""s_setprio 3
    s_barrier
    {f"ds_read_b32 v58, v58 offset:{L_RK}" if T else ""}
    s_cmp_gt_u32 s3, 1
    s_cbranch_scc1 L_t3""")
    for u in range(4): A(f"ds_read_b128 v[{64+4*u}:{67+4*u}], v23 offset:{L_PART+2048*u}")
    A("""s_waitcnt lgkmcnt(2)
    v_pk_add_f32 v[64:65], v[64:65], v[68:69]
    v_pk_add_f32 v[66:67], v[66:67], v[70:71]
    s_waitcnt lgkmcnt(0)
    v_pk_add_f32 v[72:73], v[72:73], v[76:77]
    v_pk_add_f32 v[74:75], v[74:75], v[78:79]
    v_mov_b32 v8, s41
    v_pk_add_f32 v[64:65], v[64:65], v[72:73]
    v_pk_add_f32 v[66:67], v[66:67], v[74:75]""")
    for r in range(64,68): A(f"v_and_or_b32 v{r}, v{r}, s43, v8")
    if ack: stamp(1)
    A("buffer_store_dwordx4 v[64:67], v22, s[56:59], s63 offen sc1")
    if ack: A("s_waitcnt vmcnt(0)"); stamp(2)
    A("L_t3:")
    if abl==4: A("s_branch L_fin")
    stamp(5)
    if hold: A(f"L_hold:\ns_memrealtime s[92:93]\ns_waitcnt lgkmcnt(0)\ns_sub_u32 s92, s92, s64\ns_cmp_lt_u32 s92, {hold}\ns_cbranch_scc1 L_hold")
    if HB<64:
        if gr: A(f"s_lshr_b32 s88, s2, 3\ns_and_b32 s88, s88, {gr-1}\ns_lshl_b32 s88, s88, 7\ns_add_u32 s88, s88, s89\nv_mov_b32 v5, s88")
        else: A("v_mov_b32 v5, s4\nv_lshlrev_b32 v5, 2, v5")
        if T: A(f"s_waitcnt lgkmcnt(0)\nv_readfirstlane_b32 s92, v58\ns_cmp_ge_u32 s92, {T}\ns_cbranch_scc1 L_g1_x")
        fpoll("L_g1",5,"s[56:59]",GO,8,g1c)
        if not ack and not st: stamp(1)
        if go2==2: A(f"s_cmp_lg_u32 s94, 0\ns_cbranch_scc1 L_ng2\ns_mov_b64 exec, {hex((1<<g2r)-1)}\nv_mov_b32 v5, s7\nbuffer_store_dword v5, {'v57' if hb else 'off'}, s[56:59], s95 {'offen' if hb else ''} offset:{GO2} sc1\ns_mov_b64 exec, -1\nL_ng2:")
    mpoll("L_p1",[("buffer_load_dwordx4 v[8:11], v6, s[56:59], s52 offen "+p1c,[8,9,10,11]),("buffer_load_dwordx4 v[12:15], v6, s[56:59], s62 offen "+p1c,[12,13,14,15])],"s41",TAGM,5,sl1)
    stamp(6)
    if go2==1: A(f"s_cmp_lg_u32 s94, 0\ns_cbranch_scc1 L_ng2\ns_mov_b64 exec, {hex((1<<g2r)-1)}\nv_mov_b32 v5, s7\nbuffer_store_dword v5, {'v57' if hb else 'off'}, s[56:59], s95 {'offen' if hb else ''} offset:{GO2} sc1\ns_mov_b64 exec, -1\nL_ng2:")
    for r in range(8,16): A(f"v_and_b32 v{r}, s43, v{r}")
    for r in range(8,16): A(f"v_mul_f32 v{r}, v{r}, v{20+(r-8)//4}")
    red8("add",list(range(8,16)))
    for r in range(8,16): A(f"v_cvt_pk_bf16_f32 v{r}, v{r}, v{r}")
    if go2==4: A(f"s_cmp_lg_u32 s94, 0\ns_cbranch_scc1 L_ng2\ns_mov_b64 exec, {hex((1<<g2r)-1)}\nv_mov_b32 v5, s7\nbuffer_store_dword v5, {'v57' if hb else 'off'}, s[56:59], s95 {'offen' if hb else ''} offset:{GO2} sc1\ns_mov_b64 exec, -1\nL_ng2:")
    order=[(0,0),(1,0),(0,1),(1,1),(0,2),(1,2),(0,3),(1,3)]
    def mk(i):
        bp,kg=order[i]
        for k in range(4): A(f"v_and_b32 v{80+4*i+k}, v{8+4*bp+kg}, v{16+k}")
    mk(0)
    for i in range(8):
        bp,kg=order[i]
        if i<7: mk(i+1)
        else: A("s_nop 1")
        A(f"v_mfma_f32_16x16x32_bf16 v[{48+4*bp}:{51+4*bp}], v[{80+4*i}:{83+4*i}], v[{24+4*kg}:{27+4*kg}], v[{48+4*bp}:{51+4*bp}]")
    if go2==5: A(f"s_cmp_lg_u32 s94, 0\ns_cbranch_scc1 L_ng2\ns_mov_b64 exec, {hex((1<<g2r)-1)}\nv_mov_b32 v5, s7\nbuffer_store_dword v5, {'v57' if hb else 'off'}, s[56:59], s95 {'offen' if hb else ''} offset:{GO2} sc1\ns_mov_b64 exec, -1\nL_ng2:")
    A(f"""v_mov_b32 v8, s41
    s_nop 5
    ds_write_b128 v62, v[48:51] offset:{L_RED}
    ds_write_b128 v62, v[52:55] offset:{L_RED+1024}
    s_waitcnt lgkmcnt(0)
    s_barrier
    s_cmp_gt_u32 s3, 1
    s_cbranch_scc1 L_fin""")
    for u in range(4): A(f"ds_read_b128 v[{64+4*u}:{67+4*u}], v23 offset:{L_RED+2048*u}")
    A("""s_mov_b32 exec_lo, s50
    s_mov_b32 exec_hi, s50
    s_waitcnt lgkmcnt(2)
    v_pk_add_f32 v[64:65], v[64:65], v[68:69]
    v_pk_add_f32 v[66:67], v[66:67], v[70:71]
    s_waitcnt lgkmcnt(0)
    v_pk_add_f32 v[72:73], v[72:73], v[76:77]
    v_pk_add_f32 v[74:75], v[74:75], v[78:79]
    v_pk_add_f32 v[64:65], v[64:65], v[72:73]
    v_pk_add_f32 v[66:67], v[66:67], v[74:75]""")
    for r in range(64,68): A(f"v_and_or_b32 v{r}, v{r}, s43, v8")
    if ack: stamp(3)
    A("buffer_store_dwordx4 v[64:67], v61, s[56:59], s48 offen sc1")
    if ack: A("s_waitcnt vmcnt(0)"); stamp(4)
    stamp(7); dump()
    A("s_endpgm")
    L.append(f'.section .rodata,"a"\n.p2align 6\n.amdhsa_kernel {KN}\n  .amdhsa_next_free_vgpr 256\n  .amdhsa_next_free_sgpr 96\n  .amdhsa_accum_offset 256\n  .amdhsa_group_segment_fixed_size 0\n  .amdhsa_kernarg_size 96\n  .amdhsa_user_sgpr_count 2\n  .amdhsa_user_sgpr_kernarg_segment_ptr 1\n  .amdhsa_system_sgpr_workgroup_id_x 1\n.end_amdhsa_kernel')
    return "\n".join(L)+"\n"
if __name__=="__main__":
    open("k_diag.s","w").write(gen(diag=True))
    open("k.s","w").write(gen())
    for a in sys.argv[1:]:
        kw=eval("dict(%s)"%a); nm=a.replace("=","").replace(",","_").replace("'","").replace("-","m")
        open(f"d_{nm}.s","w").write(gen(diag=True,**kw)); open(f"k_{nm}.s","w").write(gen(**kw))
```
